```python
import torch

def _softmax(x, axis=-1):
    return torch.softmax(x, dim=axis)
def _gelu(x):
    return torch.nn.functional.gelu(x, approximate="tanh")
def _silu(x):
    return torch.nn.functional.silu(x)
def _sigmoid(x):
    return torch.sigmoid(x)
def _layernorm(x, axis=-1, eps=1e-5):
    m = x.mean(dim=axis, keepdim=True)
    v = x.var(dim=axis, keepdim=True, unbiased=False)
    return (x - m) / torch.sqrt(v + eps)
def _scatter_add(tgt, idx, src, axis=0):
    return tgt.clone().index_add_(axis, idx, src)
def _segment_sum(src, seg, n):
    out = torch.zeros((n,) + src.shape[1:], dtype=src.dtype)
    return out.index_add_(0, seg, src)
def _pad(x, pw):
    flat = tuple(v for pair in reversed(pw) for v in pair)
    return torch.nn.functional.pad(x, flat)

kernel_name = 'sequential_preLN__spectral_gfnet__dense_activation_squared_relu__prompt'

def setup_inputs():

    _w = (lambda a: (lambda t: t.to(torch.bfloat16) if t.is_floating_point() else t)(torch.as_tensor(a)))
    def _A_setup():
        B, S, D = 1, 2048, 640
        Df = D // 2 + 1
        return {
            "x": _w((lambda *s: torch.randn(*s, dtype=torch.bfloat16) * 0.05)(B, S, D)),
            "w_r": _w((lambda *s: torch.randn(*s, dtype=torch.bfloat16) * 0.4)(S, Df) * 0.02),
            "w_i": _w((lambda *s: torch.randn(*s, dtype=torch.bfloat16) * 0.4)(S, Df) * 0.02),
        }
    _A_in = _A_setup()

    def _B_setup():
        B, S, D, F = 1, 2048, 640, 1728
        return {
            "x": _w((lambda *s: torch.randn(*s, dtype=torch.bfloat16) * 0.05)(B, S, D)),
            "w1": _w((lambda *s: torch.randn(*s, dtype=torch.bfloat16) * 0.05)(D, F)),
            "b1": _w((lambda *s: torch.randn(*s, dtype=torch.bfloat16) * 0.2)(F)),
            "w2": _w((lambda *s: torch.randn(*s, dtype=torch.bfloat16) * 0.05)(F, D)),
            "b2": _w((lambda *s: torch.randn(*s, dtype=torch.bfloat16) * 1.6)(D)),
        }
    _B_in = _B_setup()

    return {
        "A_x": _A_in["x"],
        "A_w_r": _A_in["w_r"],
        "A_w_i": _A_in["w_i"],
        "B_x": _B_in["x"],
        "B_w1": _B_in["w1"],
        "B_b1": _B_in["b1"],
        "B_w2": _B_in["w2"],
        "B_b2": _B_in["b2"],
    }

def reference(A_x, A_w_r, A_w_i, B_x, B_w1, B_b1, B_w2, B_b2):
    def _A_ref(x, w_r, w_i):
        B, S, D = x.shape
        X = (lambda x, axes=(-2,-1): torch.fft.rfft2(x.float(), dim=axes))(x, axes=(-2, -1))
        W = w_r + 1j * w_i
        X = X * W
        y = (lambda x, s, axes=(-2,-1): torch.fft.irfft2(x, s=s, dim=axes).to(torch.bfloat16))(X, (S, D), axes=(-2, -1))
        return y

    def _B_ref(x, w1, b1, w2, b2):
        h = torch.einsum("bsd,df->bsf", x, w1) + b1
        zero = torch.zeros_like(h)
        r = torch.where(h > zero, h, zero)
        h = r * r
        out = torch.einsum("bsf,fd->bsd", h, w2) + b2
        return out

    x = A_x
    h = x + _A_ref(_layernorm(x, axis=-1), A_w_r, A_w_i)
    h2 = h + _B_ref(_layernorm(h, axis=-1), B_w1, B_b1, B_w2, B_b2)
    return h2
```

```python
import re, struct, math

def f2u(x):
    return struct.unpack("<I", struct.pack("<f", x))[0]
def fhex(x):
    return "0x%08x" % f2u(x)

REG_RE = re.compile(r"^(-?)(?:\|)?([vas])(?:(\d+)|\[(\d+):(\d+)\])(?:\|)?$")
def regs_of(op):
    op = op.strip()
    if op in ("vcc",): return [("s", 106), ("s", 107)]
    if op in ("exec",): return [("s", 126), ("s", 127)]
    if op == "m0": return [("s", 124)]
    m = REG_RE.match(op)
    if not m: return []
    k = m.group(2)
    if m.group(3) is not None: return [(k, int(m.group(3)))]
    return [(k, i) for i in range(int(m.group(4)), int(m.group(5)) + 1)]

TRANS = ("v_exp_f32", "v_log_f32", "v_rcp_f32", "v_rsq_f32", "v_sqrt_f32", "v_sin_f32", "v_cos_f32")

def split_ops(s):
    out = []; depth = 0; cur = ""
    for ch in s:
        if ch == "[": depth += 1
        if ch == "]": depth -= 1
        if ch == "," and depth == 0:
            out.append(cur.strip()); cur = ""
        else: cur += ch
    if cur.strip(): out.append(cur.strip())
    return out

class Ins:
    def __init__(self, text):
        self.text = text
        t = text.split(";")[0].strip()
        self.label = t.endswith(":")
        self.directive = t.startswith(".")
        parts = t.split(None, 1)
        self.mn = parts[0] if parts else ""
        ops = split_ops(parts[1]) if len(parts) > 1 else []
        ops2 = []
        self.mods = ""
        for i, o in enumerate(ops):
            if i == len(ops) - 1 and " " in o:
                a, b = o.split(None, 1); ops2.append(a); self.mods = b
            else: ops2.append(o)
        self.ops = ops2
        mn = self.mn
        self.is_mfma = mn.startswith("v_mfma")
        self.is_valu = mn.startswith("v_") and not self.is_mfma
        self.is_trans = any(mn.startswith(x) for x in TRANS)
        self.is_dpp = "_dpp" in mn or "quad_perm" in self.mods or "row_" in self.mods
        self.is_perml = mn.startswith("v_permlane")
        self.is_rdlane = mn.startswith("v_readlane") or mn.startswith("v_readfirstlane")
        self.is_ds = mn.startswith("ds_")
        self.is_vmem = mn.startswith("buffer_") or mn.startswith("global_")
        self.is_salu = mn.startswith("s_")
        self.is_branch = mn.startswith("s_cbranch") or mn == "s_branch"
        self.lds_dma = self.is_vmem and (" lds" in (" " + self.mods) or "load_lds" in mn)
        w = []; r = []
        R = [regs_of(o) for o in self.ops]
        if self.is_mfma:
            w = R[0]; self.A = R[1]; self.B = R[2]; self.C = R[3]; r = R[1] + R[2] + R[3]
            self.passes = 8 if "32x32" in mn else 4
        elif self.is_valu:
            if self.is_perml:
                w = R[0] + R[1]; r = R[0] + R[1]
            else:
                w = list(R[0]); r = sum(R[1:], [])
                if "_co_" in mn:
                    w += R[1]; r = sum(R[2:], [])
                if mn.startswith("v_fmac") or mn.startswith("v_dot2c") or "d16" in mn: r += R[0]
                if mn.startswith("v_cndmask") and len(self.ops) == 3: r += regs_of("vcc")
                if mn.startswith("v_cmpx"): w += regs_of("exec")
        elif self.is_ds:
            if "read" in mn or "permute" in mn or "swizzle" in mn:
                w = R[0]; r = sum(R[1:], [])
            else: r = sum(R, [])
        elif self.is_vmem:
            if "load" in mn and not self.lds_dma:
                w = R[0]; r = sum(R[1:], [])
            else: r = sum(R, [])
            if self.lds_dma: r += regs_of("m0")
            self.store_wide = ("store_dwordx4" in mn or "store_dwordx3" in mn)
            if self.store_wide:
                self.data = R[0] if mn.startswith("buffer_") else R[1]
        elif self.is_salu:
            if mn.startswith("s_cmp") or self.is_branch or mn in ("s_waitcnt", "s_nop", "s_barrier", "s_endpgm", "s_setprio", "s_sleep"):
                r = sum(R, [])
            elif R:
                w = R[0]; r = sum(R[1:], [])
                if "saveexec" in mn: w = w + regs_of("exec")
        self.w = set(w); self.r = set(r)
    def states(self):
        if self.label or self.directive or not self.mn: return 0
        if self.mn == "s_nop": return int(self.ops[0]) + 1
        return 1

def required(p, c):
    n = 0
    vw = {x for x in p.w if x[0] in "va"}
    sw = {x for x in p.w if x[0] == "s"}
    if p.is_valu:
        if c.is_mfma and vw & c.r: n = max(n, 2)
        if p.is_trans and c.is_valu and not c.is_trans and vw & c.r: n = max(n, 1)
        if p.is_trans and (c.is_mfma) and vw & c.r: n = max(n, 2)
        if c.is_dpp and vw & c.r: n = max(n, 2)
        if c.is_perml and vw & c.r: n = max(n, 2)
        if c.is_rdlane and vw & c.r: n = max(n, 1)
        if c.is_valu and sw & c.r: n = max(n, 4 if c.is_rdlane else 2)
        if c.is_vmem and sw & c.r: n = max(n, 5)
        ex = {("s", 126), ("s", 127)}
        if sw & ex:
            if c.is_dpp: n = max(n, 5)
            if c.is_mfma or c.is_perml or c.is_rdlane: n = max(n, 4)
        if ("op_sel" in p.mods or "sdwa" in p.mn) and not p.mn.startswith("v_pk_") and c.is_valu and vw & c.r: n = max(n, 1)
    if p.is_salu:
        if ("s", 124) in p.w and c.lds_dma: n = max(n, 1)
    if p.is_mfma:
        big = 12 if p.passes == 8 else 8
        if c.is_mfma:
            if p.w & (set(c.A) | set(c.B)): n = max(n, big)
            if p.w & set(c.C):
                if set(c.C) == p.w and c.passes == p.passes: pass
                else: n = max(n, big - 2)
            elif p.w & c.w: n = max(n, big)
        elif (c.is_valu or c.is_ds or c.is_vmem) and (p.w & (c.r | c.w)): n = max(n, big)
        if c.is_valu and set(p.C) & c.w: n = max(n, 7 if p.passes == 8 else 3)
    if p.is_vmem and getattr(p, "store_wide", False):
        if set(p.data) & c.w: n = max(n, 2)
    return n

class Asm:
    def __init__(self):
        self.lines = []
    def __call__(self, s):
        for l in s.split("\n"):
            l = l.strip()
            if l: self.lines.append(l)
    def finalize(self):
        out = []
        hist = []
        pos = 0
        nnops = 0
        for l in self.lines:
            ins = Ins(l)
            if ins.label or ins.directive or not ins.mn:
                out.append(l); continue
            need = 0
            if ins.is_branch:
                for p, pp in hist:
                    m = 0
                    if p.is_mfma: m = 12 if p.passes == 8 else 8
                    elif p.is_valu: m = 5 if {x for x in p.w if x[0] == "s"} else 2
                    elif p.is_salu and ("s", 124) in p.w: m = 1
                    elif p.is_vmem and getattr(p, "store_wide", False): m = 2
                    need = max(need, m - (pos - pp) - 1)
            else:
                for p, pp in hist:
                    need = max(need, required(p, ins) - (pos - pp))
            while need > 0:
                k = min(need, 16)
                out.append(f"s_nop {k-1}"); pos += k; need -= k; nnops += 1
            out.append(l)
            pos += ins.states()
            hist.append((ins, pos))
            hist = [(p, pp) for p, pp in hist if pos - pp < 20]
        self.nnops = nnops
        res = []
        for l in out:
            t = l.split(";")[0].strip()
            res.append(l if (t.endswith(":") or t.startswith(".")) else "    " + l)
        return "\n".join(res) + "\n"

def vr(a, n=1):
    return f"v{a}" if n == 1 else f"v[{a}:{a+n-1}]"
def sr(a, n=1):
    return f"s{a}" if n == 1 else f"s[{a}:{a+n-1}]"
def ar(a, n=1):
    return f"a{a}" if n == 1 else f"a[{a}:{a+n-1}]"

def kernel_begin(name):
    return f""".text
.globl {name}
.p2align 8
.type {name},@function
{name}:"""

def kernel_desc(name, vgpr, sgpr=96, accum=None):
    if accum is None: accum = (vgpr + 3) // 4 * 4
    return f""".section .rodata,"a"
.p2align 6
.amdhsa_kernel {name}
  .amdhsa_next_free_vgpr {vgpr}
  .amdhsa_next_free_sgpr {sgpr}
  .amdhsa_accum_offset {accum}
  .amdhsa_group_segment_fixed_size 0
  .amdhsa_kernarg_size 88
  .amdhsa_user_sgpr_count 2
  .amdhsa_user_sgpr_kernarg_segment_ptr 1
  .amdhsa_system_sgpr_workgroup_id_x 1
.end_amdhsa_kernel"""
```

```python
import sys, math
sys.path.insert(0, "dev")
from asmlib import *

NAME = "sequential_preLN__spectral_gfnet__dense_activation_squared_relu__prompt"
CS = 8320
MB = 1 << 20
U_OFF, WT_OFF, Z_OFF, A2_OFF, HR_OFF, H_OFF = 0, 4*MB, 8*MB, 12*MB, 16*MB, 20*MB
COLBYTES = 320 * CS
STAMP = len(sys.argv) > 2 and sys.argv[2] == "stamp"
STAMP_OFF = 64 * MB

def srd(a, d, base, off, size):
    if off:
        a(f"s_add_u32 s{d}, s{base}, {off}")
        a(f"s_addc_u32 s{d+1}, s{base+1}, 0")
    else:
        if d != base:
            a(f"s_mov_b32 s{d}, s{base}")
            a(f"s_mov_b32 s{d+1}, s{base+1}")
    a(f"s_mov_b32 s{d+2}, {size}")
    a(f"s_mov_b32 s{d+3}, 0x20000")

def stamp_begin(a):
    if STAMP:
        a("s_memrealtime s[90:91]")
        a("s_load_dwordx2 s[88:89], s[0:1], 80")
        a("v_mov_b32 v255, v0" if False else "")
def stamp_end(a, kidx, name):
    if STAMP:
        a("s_waitcnt vmcnt(0) lgkmcnt(0)")
        a("s_memrealtime s[92:93]")
        a("s_waitcnt lgkmcnt(0)")
        a("v_mov_b32 v2, s90\nv_mov_b32 v3, s92")
        a(f"s_lshl_b32 s94, s2, 5\ns_add_u32 s94, s94, {STAMP_OFF + kidx*65536}")
        a("s_lshl_b32 s95, s87, 3\ns_add_u32 s94, s94, s95")
        a("v_mov_b32 v4, s94")
        a("s_mov_b64 exec, 1")
        a("global_store_dwordx2 v4, v[2:3], s[88:89]")

def reduce32(a, v, t):
    a(f"v_add_f32_dpp v{v}, v{v}, v{v} quad_perm:[1,0,3,2] row_mask:0xf bank_mask:0xf")
    a(f"v_add_f32_dpp v{v}, v{v}, v{v} quad_perm:[2,3,0,1] row_mask:0xf bank_mask:0xf")
    a(f"v_add_f32_dpp v{v}, v{v}, v{v} row_half_mirror row_mask:0xf bank_mask:0xf")
    a(f"v_add_f32_dpp v{v}, v{v}, v{v} row_mirror row_mask:0xf bank_mask:0xf")
    a(f"v_mov_b32 v{t}, v{v}")
    a(f"v_permlane16_swap_b32 v{v}, v{t}")
    a(f"v_add_f32 v{v}, v{v}, v{t}")

def round_bf16(a, v):
    a(f"v_cvt_pk_bf16_f32 v{v}, v{v}, v{v}")
    a(f"v_lshlrev_b32 v{v}, 16, v{v}")

def ln_stats(a, X, npair, vs, vt, vmean, vr_, vc, D):
    a(f"v_pk_add_f32 {vr(vs,2)}, {vr(X,2)}, {vr(X+2,2)}")
    a(f"v_pk_add_f32 {vr(vt,2)}, {vr(X+4,2)}, {vr(X+6,2)}")
    for i in range(4, npair):
        d = vs if i % 2 == 0 else vt
        a(f"v_pk_add_f32 {vr(d,2)}, {vr(d,2)}, {vr(X+2*i,2)}")
    a(f"v_pk_add_f32 {vr(vs,2)}, {vr(vs,2)}, {vr(vt,2)}")
    a(f"v_add_f32 v{vmean}, v{vs}, v{vs+1}")
    reduce32(a, vmean, vt)
    a(f"v_mul_f32 v{vmean}, {fhex(1.0/640)}, v{vmean}")
    for i in range(npair):
        a(f"v_pk_add_f32 {vr(D+2*i,2)}, {vr(X+2*i,2)}, {vr(vmean,2)} op_sel_hi:[1,0] neg_lo:[0,1] neg_hi:[0,1]")
    a(f"v_pk_mul_f32 {vr(vs,2)}, {vr(D,2)}, {vr(D,2)}")
    a(f"v_pk_mul_f32 {vr(vt,2)}, {vr(D+2,2)}, {vr(D+2,2)}")
    for i in range(2, npair):
        d = vs if i % 2 == 0 else vt
        a(f"v_pk_fma_f32 {vr(d,2)}, {vr(D+2*i,2)}, {vr(D+2*i,2)}, {vr(d,2)}")
    a(f"v_pk_add_f32 {vr(vs,2)}, {vr(vs,2)}, {vr(vt,2)}")
    a(f"v_add_f32 v{vr_}, v{vs}, v{vs+1}")
    reduce32(a, vr_, vt)
    a(f"v_mul_f32 v{vr_}, {fhex(1.0/640)}, v{vr_}")
    round_bf16(a, vr_)
    a(f"v_add_f32 v{vr_}, {fhex(1e-5)}, v{vr_}")
    round_bf16(a, vr_)
    a(f"v_sqrt_f32 v{vr_}, v{vr_}")
    round_bf16(a, vmean)
    round_bf16(a, vr_)
    a(f"v_rcp_f32 v{vr_}, v{vr_}")
    a(f"v_mul_f32 v{vc}, v{vmean}, v{vr_}")
    a(f"v_sub_f32 v{vc}, 0, v{vc}")

def col_tables(a, vkb, COL, FLIP, vbase, t0, t1, t2, sw, sCS):
    a(f"v_mul_u32_u24 v{t0}, 52, v{vkb}")
    a(f"v_lshrrev_b32 v{t0}, 8, v{t0}")
    a(f"v_mul_u32_u24 v{t0}, 5, v{t0}")
    a(f"v_sub_u32 v{t0}, v{vkb}, v{t0}")
    a(f"v_mul_u32_u24 v{t0}, 3, v{t0}")
    a(f"v_add_u32 v{t1}, -5, v{t0}")
    a(f"v_min_u32 v{t0}, v{t0}, v{t1}")
    a(f"v_add_u32 v{t1}, -5, v{t0}")
    a(f"v_min_u32 v{t0}, v{t0}, v{t1}")
    for ka in range(5):
        if ka:
            a(f"v_add_u32 v{t1}, 2, v{t0}")
            a(f"v_add_u32 v{t0}, -3, v{t0}")
            a(f"v_min_u32 v{t0}, v{t0}, v{t1}")
        a(f"v_lshl_add_u32 v{t1}, v{t0}, 7, v{vkb}")
        a(f"v_sub_u32 v{t2}, 0x280, v{t1}")
        a(f"v_min_u32 v{t2}, v{t2}, v{t1}")
        a(f"v_mad_u32_u24 v{COL+ka}, v{t2}, s{sCS}, v{vbase}")
        a(f"v_sub_u32 v{t1}, 0x140, v{t1}")
        a(f"v_ashrrev_i32 v{t1}, 31, v{t1}")
        a(f"v_and_b32 v{FLIP+ka}, 0x80008000, v{t1}")

SPECIAL_COL = [0, 256, 128, 192, 64]
SPECIAL_FLIP = [0, 0, 1, 0, 1]
def col_tables_special(a, COL, FLIP, vbase):
    for ka in range(5):
        a(f"v_add_u32 v{COL+ka}, {SPECIAL_COL[ka]*CS}, v{vbase}")
        a(f"v_mov_b32 v{FLIP+ka}, {'0x80008000' if SPECIAL_FLIP[ka] else 0}")

def set_exec_n0(a):
    a("s_mov_b32 exec_lo, 0x00010001")
    a("s_mov_b32 exec_hi, 0x00010001")

C1, C2, S1, S2 = math.cos(2*math.pi/5), math.cos(4*math.pi/5), math.sin(2*math.pi/5), math.sin(4*math.pi/5)

def dft5_core(a, zr, zi, T, sc1, sc2, ss1, ss2):
    t = {}
    names = ["t1r","t1i","t2r","t2i","t3r","t3i","t4r","t4i","A1r","A1i","A2r","A2i","B1r","B1i","B2r","B2i","Z0r","Z0i"]
    for i, n in enumerate(names): t[n] = T + 2*i
    P = lambda r: vr(r, 2)
    for c, z in (("r", zr), ("i", zi)):
        a(f"v_pk_add_f32 {P(t['t1'+c])}, {P(z[1])}, {P(z[4])}")
        a(f"v_pk_add_f32 {P(t['t2'+c])}, {P(z[2])}, {P(z[3])}")
        a(f"v_pk_add_f32 {P(t['t3'+c])}, {P(z[1])}, {P(z[4])} neg_lo:[0,1] neg_hi:[0,1]")
        a(f"v_pk_add_f32 {P(t['t4'+c])}, {P(z[2])}, {P(z[3])} neg_lo:[0,1] neg_hi:[0,1]")
    for c, z in (("r", zr), ("i", zi)):
        a(f"v_pk_fma_f32 {P(t['A1'+c])}, {P(t['t1'+c])}, {sr(sc1,2)}, {P(z[0])} op_sel_hi:[1,0,1]")
        a(f"v_pk_fma_f32 {P(t['A2'+c])}, {P(t['t1'+c])}, {sr(sc2,2)}, {P(z[0])} op_sel_hi:[1,0,1]")
        a(f"v_pk_mul_f32 {P(t['B1'+c])}, {P(t['t3'+c])}, {sr(ss1,2)} op_sel_hi:[1,0]")
        a(f"v_pk_mul_f32 {P(t['B2'+c])}, {P(t['t3'+c])}, {sr(ss2,2)} op_sel_hi:[1,0]")
        a(f"v_pk_add_f32 {P(t['Z0'+c])}, {P(t['t1'+c])}, {P(z[0])}")
    for c, z in (("r", zr), ("i", zi)):
        a(f"v_pk_fma_f32 {P(t['A1'+c])}, {P(t['t2'+c])}, {sr(sc2,2)}, {P(t['A1'+c])} op_sel_hi:[1,0,1]")
        a(f"v_pk_fma_f32 {P(t['A2'+c])}, {P(t['t2'+c])}, {sr(sc1,2)}, {P(t['A2'+c])} op_sel_hi:[1,0,1]")
        a(f"v_pk_fma_f32 {P(t['B1'+c])}, {P(t['t4'+c])}, {sr(ss2,2)}, {P(t['B1'+c])} op_sel_hi:[1,0,1]")
        a(f"v_pk_fma_f32 {P(t['B2'+c])}, {P(t['t4'+c])}, {sr(ss1,2)}, {P(t['B2'+c])} op_sel_hi:[1,0,1] neg_lo:[1,0,0] neg_hi:[1,0,0]")
        a(f"v_pk_add_f32 {P(t['Z0'+c])}, {P(t['Z0'+c])}, {P(t['t2'+c])}")
    return t

def prefetch_code(a, vt, s0, first, nlines_lbl_from, uid):
    pass

def k1(a):
    name = "k1_kernel"
    a(kernel_begin(name))
    stamp_begin(a)
    a("s_load_dwordx4 s[4:7], s[0:1], 0")
    a("s_load_dwordx2 s[16:17], s[0:1], 16")
    a("s_load_dwordx2 s[18:19], s[0:1], 80")
    a("v_lshrrev_b32 v2, 6, v0")
    a("v_and_b32 v1, 63, v0")
    a("v_readfirstlane_b32 s20, v2")
    if STAMP: a("s_mov_b32 s87, s20")
    a("s_cmp_ge_u32 s2, 256")
    a("s_cbranch_scc1 K1_W")
    a("s_getpc_b64 s[30:31]")
    a("K1_PC:")
    a("s_add_u32 s30, s30, k1_kernel-K1_PC")
    a("s_addc_u32 s31, s31, -1")
    a("s_lshr_b32 s21, s2, 3")
    a("s_and_b32 s22, s2, 7")
    a("s_and_b32 s23, s21, 1")
    a("s_lshl_b32 s23, s23, 2")
    a("s_add_u32 s23, s23, s20")
    a("s_lshl_b32 s23, s23, 13")
    a("v_lshl_add_u32 v3, v1, 7, s23")
    a("v_cmp_gt_u32 vcc, CODE_END-k1_kernel, v3")
    a("s_and_saveexec_b64 s[32:33], vcc")
    a("s_cbranch_execz K1_nopf")
    a("global_load_dword v127, v3, s[30:31]")
    a("K1_nopf:")
    a("s_mov_b64 exec, s[32:33]")
    a("s_lshr_b32 s23, s22, 1\ns_lshl_b32 s23, s23, 4")
    a("s_and_b32 s24, s22, 1\ns_lshl_b32 s24, s24, 2\ns_add_u32 s23, s23, s24")
    a("s_lshr_b32 s24, s20, 1\ns_lshl_b32 s24, s24, 3\ns_add_u32 s23, s23, s24")
    a("s_and_b32 s24, s20, 1\ns_lshl_b32 s24, s24, 1\ns_add_u32 s23, s23, s24")
    a("s_lshl_b32 s23, s23, 5\ns_add_u32 s23, s23, s21\ns_mul_i32 s23, s23, 1280")
    a("v_lshrrev_b32 v52, 5, v1")
    a("v_and_b32 v53, 31, v1")
    a("v_mul_u32_u24 v54, 0xa000, v52")
    a("v_add_u32 v55, 1, v53\nv_and_b32 v55, 31, v55")
    a("v_mad_u32_u24 v56, v53, 40, v54")
    a("v_mad_u32_u24 v57, v55, 40, v54")
    a("s_waitcnt lgkmcnt(0)")
    srd(a, 8, 4, 0, 2048*1280)
    a("buffer_load_dwordx4 v[2:5], v56, s[8:11], s23 offen")
    a("buffer_load_dwordx4 v[6:9], v56, s[8:11], s23 offen offset:16")
    a("buffer_load_dwordx2 v[10:11], v56, s[8:11], s23 offen offset:32")
    a("buffer_load_dwordx4 v[12:15], v57, s[8:11], s23 offen")
    a("buffer_load_dwordx2 v[16:17], v57, s[8:11], s23 offen offset:16")
    srd(a, 12, 18, U_OFF, COLBYTES)
    a("v_lshlrev_b32 v53, 3, v53")
    a("s_lshl_b32 s24, s20, 6")
    a("v_lshl_add_u32 v54, v52, 4, s24")
    a("v_add_u32 v55, 32, v54")
    offs = [0, 20, 7, 26, 13]; aof = [0, 2, 4, 1, 3]
    for r in range(5):
        a(f"v_add_u32 v56, {offs[r]*8}, v53")
        a(f"v_and_b32 v56, 0xf8, v56")
        a(f"v_xor_b32 v57, v56, v{54 + (aof[r]&1)}")
        a(f"v_and_b32 v56, 0xf0, v56")
        a(f"v_lshl_add_u32 v{120+r}, v56, 4, v57")
    a("v_and_b32 v53, 15, v1")
    a("v_lshrrev_b32 v54, 4, v1")
    a("v_xor_b32 v55, v53, v54")
    a("v_lshlrev_b32 v55, 4, v55")
    a("v_lshl_add_u32 v62, v54, 8, v55")
    a("v_xor_b32 v63, 64, v62")
    a("v_xor_b32 v125, 0x80, v62")
    a("v_xor_b32 v126, 0xc0, v62")
    RD = [62, 63, 125, 126]
    a("s_lshl_b32 s24, s20, 4")
    a("v_add_u32 v18, s24, v53")
    a("s_lshl_b32 s25, s22, 10\ns_lshl_b32 s26, s21, 5\ns_add_u32 s25, s25, s26")
    a("v_lshl_add_u32 v19, v54, 2, s25")
    a(f"s_mov_b32 s26, {CS}")
    a("v_cvt_f32_u32 v96, v18")
    a(f"v_mul_f32 v96, {fhex(-1.0/128)}, v96")
    a("v_cvt_f32_u32 v97, v54")
    a("v_mul_f32 v97, v97, v96")
    a("v_mul_f32 v97, 8.0, v97" if False else f"v_mul_f32 v97, {fhex(8.0)}, v97")
    a(f"v_mul_f32 v98, {fhex(25.0)}, v96")
    col_tables(a, 18, 52, 57, 19, 100, 101, 102, 20, 26)
    for t in range(4):
        for i in range(8):
            if i: a(f"v_add_f32 v{100+i}, v{100+i-1}, v96")
            elif t == 0: a("v_mov_b32 v100, v97")
            else: a("v_add_f32 v100, v107, v98")
        for i in range(8):
            a(f"v_cos_f32 v{108+i}, v{100+i}")
        for i in range(4):
            a(f"v_cvt_pk_bf16_f32 v{64+4*t+i}, v{108+2*i}, v{109+2*i}")
        for i in range(8):
            a(f"v_sin_f32 v{108+i}, v{100+i}")
        for i in range(4):
            a(f"v_cvt_pk_bf16_f32 v{80+4*t+i}, v{108+2*i}, v{109+2*i}")
    a("s_cmp_lg_u32 s20, 0")
    a("s_cbranch_scc1 K1_nosp1")
    set_exec_n0(a)
    for i in range(16): a(f"v_mov_b32 v{80+i}, 0xbf803f80")
    col_tables_special(a, 52, 57, 19)
    a("s_mov_b64 exec, -1")
    a("K1_nosp1:")
    a(f"s_mov_b32 s40, {fhex(C1)}\ns_mov_b32 s42, {fhex(C2)}\ns_mov_b32 s44, {fhex(S1)}\ns_mov_b32 s46, {fhex(S2)}")
    a("s_waitcnt vmcnt(2)")
    for i in range(10):
        a(f"v_lshlrev_b32 v{20+2*i}, 16, v{2+i}")
        a(f"v_and_b32 v{21+2*i}, 0xffff0000, v{2+i}")
    ln_stats(a, 20, 10, 116, 118, 18, 2, 4, 96)
    a("s_waitcnt vmcnt(0)")
    a("v_and_b32 v41, 0xffff0000, v12")
    a("v_lshlrev_b32 v42, 16, v13\nv_and_b32 v43, 0xffff0000, v13")
    a("v_lshlrev_b32 v46, 16, v15\nv_and_b32 v47, 0xffff0000, v15")
    a("v_and_b32 v51, 0xffff0000, v17")
    for e in (4, 8, 12, 14, 16, 18, 22, 26):
        a(f"v_pk_fma_f32 {vr(20+e,2)}, {vr(20+e,2)}, v[2:3], v[4:5] op_sel_hi:[1,0,0]")
    for e in (0, 10, 21, 31):
        a(f"v_fma_f32 v{20+e}, v{20+e}, v2, v4")
    o_r = [0, 3, 2, 1, 0]
    for r in range(5):
        es = [5*(o_r[r]+i)+r for i in range(4)]
        a(f"v_cvt_pk_bf16_f32 v{96+2*r}, v{20+es[0]}, v{20+es[1]}")
        a(f"v_cvt_pk_bf16_f32 v{97+2*r}, v{20+es[2]}, v{20+es[3]}")
        a(f"ds_write_b64 v{120+r}, {vr(96+2*r,2)} offset:{(aof[r]>>1)*4096}")
    a("s_waitcnt lgkmcnt(0)")
    a("s_barrier")
    for p in range(3):
        for t in range(4):
            a(f"ds_read_b128 {vr(4+16*p+4*t,4)}, v{RD[t]} offset:{p*4096+t*1024}")
    for p in range(3):
        for t in range(4):
            a(f"s_waitcnt lgkmcnt({11-(4*p+t)})")
            for tile in range(2):
                acc = vr(96+8*p+4*tile, 4)
                a(f"v_mfma_f32_16x16x32_bf16 {acc}, {vr(4+16*p+4*t,4)}, {vr(64+16*tile+4*t,4)}, {acc if t else 0}")
    zr = [96+8*(x>>1)+2*(x&1) for x in range(5)]
    zi = [r+4 for r in zr]
    t = dft5_core(a, zr, zi, 4, 40, 42, 44, 46)
    P = lambda r: vr(r, 2)
    NEG = "neg_lo:[0,1] neg_hi:[0,1]"
    a(f"v_cvt_pk_bf16_f32 v40, v{t['Z0r']}, v{t['Z0r']+1}")
    a(f"v_cvt_pk_bf16_f32 v41, v{t['Z0i']}, v{t['Z0i']+1}")
    for (k, kc, A, B, base) in ((1, 4, "A1", "B1", 4), (2, 3, "A2", "B2", 12)):
        a(f"v_pk_add_f32 {P(base)}, {P(t[A+'r'])}, {P(t[B+'i'])}")
        a(f"v_pk_add_f32 {P(base+2)}, {P(t[A+'i'])}, {P(t[B+'r'])} {NEG}")
        a(f"v_pk_add_f32 {P(base+4)}, {P(t[A+'r'])}, {P(t[B+'i'])} {NEG}")
        a(f"v_pk_add_f32 {P(base+6)}, {P(t[A+'i'])}, {P(t[B+'r'])}")
        a(f"v_cvt_pk_bf16_f32 v{40+2*k}, v{base}, v{base+1}")
        a(f"v_cvt_pk_bf16_f32 v{41+2*k}, v{base+2}, v{base+3}")
        a(f"v_cvt_pk_bf16_f32 v{40+2*kc}, v{base+4}, v{base+5}")
        a(f"v_cvt_pk_bf16_f32 v{41+2*kc}, v{base+6}, v{base+7}")
    a("s_cmp_lg_u32 s20, 0")
    a("s_cbranch_scc1 K1_nosp2")
    set_exec_n0(a)
    a(f"v_mov_b32 v40, v41")
    a(f"v_mov_b32 v41, 0")
    for (k, kc, A, B) in ((1, 4, "A1", "B1"), (2, 3, "A2", "B2")):
        a(f"v_cvt_pk_bf16_f32 v{40+2*k}, v{t[A+'r']}, v{t[A+'r']+1}")
        a(f"v_cvt_pk_bf16_f32 v{41+2*k}, -v{t[B+'r']}, -v{t[B+'r']+1}")
        a(f"v_cvt_pk_bf16_f32 v{40+2*kc}, v{t[A+'i']}, v{t[A+'i']+1}")
        a(f"v_cvt_pk_bf16_f32 v{41+2*kc}, -v{t[B+'i']}, -v{t[B+'i']+1}")
    a("s_mov_b64 exec, -1")
    a("K1_nosp2:")
    for k in range(5):
        a(f"v_xor_b32 v{41+2*k}, v{41+2*k}, v{57+k}")
        a(f"buffer_store_dword v{40+2*k}, v{52+k}, s[12:15], 0 offen")
        a(f"buffer_store_dword v{41+2*k}, v{52+k}, s[12:15], 0 offen offset:16")
    stamp_end(a, 0, name)
    a("s_endpgm")
    a("K1_W:")
    a("s_cmp_ge_u32 s2, 576")
    a("s_cbranch_scc1 K1_end")
    a("s_sub_u32 s21, s2, 256")
    a("s_mul_i32 s22, s21, 52429\ns_lshr_b32 s22, s22, 18")
    a("s_mul_i32 s23, s22, 5\ns_sub_u32 s23, s21, s23")
    a("s_and_b32 s24, s22, 7")
    a("s_lshr_b32 s25, s22, 3")
    a("s_lshl_b32 s26, s24, 3\ns_lshl_b32 s27, s20, 1\ns_add_u32 s26, s26, s27")
    a("s_lshl_b32 s27, s25, 8\ns_add_u32 s27, s27, s26\ns_mul_i32 s36, s27, 642")
    a("s_add_u32 s37, s36, 41088\ns_add_u32 s38, s37, 41088\ns_add_u32 s39, s38, 41088")
    a("s_lshl_b32 s23, s23, 6")
    a("v_add_u32 v2, s23, v1")
    a("v_cmp_eq_u32 vcc, 0, v2")
    a("v_mov_b32 v3, 0x140")
    a("v_cndmask_b32 v3, v2, v3, vcc")
    a("v_lshlrev_b32 v3, 1, v3")
    a("s_lshr_b32 s28, s26, 5\ns_lshl_b32 s28, s28, 12")
    a("s_lshl_b32 s29, s25, 9\ns_add_u32 s28, s28, s29")
    a("s_and_b32 s29, s26, 31\ns_lshl_b32 s29, s29, 4\ns_add_u32 s28, s28, s29")
    a(f"v_mul_u32_u24 v4, {CS}, v2")
    a("s_waitcnt lgkmcnt(0)")
    srd(a, 8, 6, 0, 2048*642)
    srd(a, 12, 16, 0, 2048*642)
    for j in range(2):
        for i in range(4):
            a(f"buffer_load_ushort v{8+4*j+i}, v3, s[8:11], s{36+i} offen offset:{642*j}")
            a(f"buffer_load_ushort v{16+4*j+i}, v3, s[12:15], s{36+i} offen offset:{642*j}")
    srd(a, 32, 18, WT_OFF, COLBYTES)
    for i in range(8):
        a(f"s_waitcnt vmcnt({14-2*i})")
        a(f"v_lshl_or_b32 v{8+i}, v{16+i}, 16, v{8+i}")
    a("buffer_store_dwordx4 v[8:11], v4, s[32:35], s28 offen")
    a("buffer_store_dwordx4 v[12:15], v4, s[32:35], s28 offen offset:16")
    stamp_end(a, 0, name)
    a("K1_end:")
    a("s_endpgm")
    return name, 128, "grid=(576,1,1) block=(256,1,1) lds=12288"

def gen_angles(a, n, start, step, step5, tmp, consume):
    for gidx in range(n // 8):
        for i in range(8):
            if gidx == 0 and i == 0: a(f"v_mov_b32 v{tmp}, v{start}")
            else:
                prev = tmp + (i - 1) % 8
                a(f"v_add_f32 v{tmp+i}, v{prev}, v{step5 if i % 4 == 0 else step}")
        consume(gidx)

def cmul_pk(a, outr, outi, xr, xi, c, s, sign):
    for i in range(8):
        o = 2*i
        a(f"v_pk_mul_f32 {vr(outr+o,2)}, {vr(xr+o,2)}, {vr(c+o,2)}")
        a(f"v_pk_mul_f32 {vr(outi+o,2)}, {vr(xi+o,2)}, {vr(c+o,2)}")
    for i in range(8):
        o = 2*i
        n1 = " neg_lo:[1,0,0] neg_hi:[1,0,0]" if sign > 0 else ""
        n2 = " neg_lo:[1,0,0] neg_hi:[1,0,0]" if sign < 0 else ""
        a(f"v_pk_fma_f32 {vr(outr+o,2)}, {vr(xi+o,2)}, {vr(s+o,2)}, {vr(outr+o,2)}{n1}")
        a(f"v_pk_fma_f32 {vr(outi+o,2)}, {vr(xr+o,2)}, {vr(s+o,2)}, {vr(outi+o,2)}{n2}")

def cvt16(a, dst, src):
    for i in range(8):
        a(f"v_cvt_pk_bf16_f32 v{dst+i}, v{src+2*i}, v{src+2*i+1}")

def k2(a):
    name = "k2_kernel"
    XR, XI, WT, C64, S64, NS64, C32, S32, NS32 = 8, 24, 40, 56, 72, 88, 104, 112, 120
    T1C, T1S, T2C, T2S, AR, AI, TR, TI = 128, 144, 160, 176, 192, 208, 224, 240
    M = "v_mfma_f32_32x32x16_bf16"
    a(kernel_begin(name))
    stamp_begin(a)
    a("s_load_dwordx2 s[18:19], s[0:1], 80")
    a("s_load_dwordx4 s[4:7], s[0:1], 32")
    a("s_load_dwordx4 s[36:39], s[0:1], 48")
    a("v_lshrrev_b32 v2, 6, v0")
    a("v_and_b32 v1, 63, v0")
    a("v_readfirstlane_b32 s20, v2")
    if STAMP: a("s_mov_b32 s87, s20")
    a("s_cmp_ge_u32 s2, 320")
    a("s_cbranch_scc1 K2_P")
    a(f"s_mul_i32 s21, s2, {CS}")
    a("s_lshl_b32 s22, s20, 12")
    a("s_add_u32 s23, s21, s22")
    a("s_xor_b32 s24, s22, 4096")
    a("s_add_u32 s24, s24, s21")
    a("v_lshlrev_b32 v2, 5, v1")
    a("v_lshlrev_b32 v3, 4, v1")
    a("s_waitcnt lgkmcnt(0)")
    srd(a, 8, 18, U_OFF, COLBYTES)
    for t in range(4):
        so = "s23" if t < 2 else "s24"
        a(f"buffer_load_dwordx4 {vr(XR+4*t,4)}, v2, s[8:11], {so} offen offset:{(t&1)*2048}")
        a(f"buffer_load_dwordx4 {vr(XI+4*t,4)}, v2, s[8:11], {so} offen offset:{(t&1)*2048+16}")
    srd(a, 12, 18, WT_OFF, COLBYTES)
    for q in range(4):
        a(f"buffer_load_dwordx4 {vr(WT+4*q,4)}, v3, s[12:15], s23 offen offset:{q*1024}")
    srd(a, 28, 18, Z_OFF, COLBYTES)
    a("v_and_b32 v4, 31, v1")
    a("v_lshrrev_b32 v5, 5, v1")
    a("s_lshl_b32 s25, s20, 5")
    a("v_add_u32 v6, s25, v4")
    a(f"v_cvt_f32_u32 v{TR}, v6")
    a(f"v_cvt_f32_u32 v{TR+1}, v4")
    a(f"v_lshl_add_u32 v7, v5, 2, s25")
    a(f"v_cvt_f32_u32 v{TR+2}, v7")
    a(f"v_lshlrev_b32 v7, 2, v5")
    a(f"v_cvt_f32_u32 v{TR+3}, v7")
    ST, ST5, SA = TR+4, TR+5, TR+6
    ANG, TMP = TI, TI+8
    a(f"v_mul_f32 v{ST}, {fhex(1/64)}, v{TR}")
    a(f"v_mul_f32 v{ST5}, {fhex(5.0)}, v{ST}")
    a(f"v_mul_f32 v{SA}, v{TR+2}, v{ST}")
    def cons_mat(Cb, Sb, NSb):
        def f(g):
            for i in range(8): a(f"v_cos_f32 v{TMP+i}, v{ANG+i}")
            for i in range(4): a(f"v_cvt_pk_bf16_f32 v{Cb+4*g+i}, v{TMP+2*i}, v{TMP+2*i+1}")
            for i in range(8): a(f"v_sin_f32 v{TMP+i}, v{ANG+i}")
            for i in range(4): a(f"v_cvt_pk_bf16_f32 v{Sb+4*g+i}, v{TMP+2*i}, v{TMP+2*i+1}")
            for i in range(4): a(f"v_xor_b32 v{NSb+4*g+i}, 0x80008000, v{Sb+4*g+i}")
        return f
    gen_angles(a, 32, SA, ST, ST5, ANG, cons_mat(C64, S64, NS64))
    def cons_tw(Cb, Sb):
        def f(g):
            for i in range(8): a(f"v_cos_f32 v{Cb+8*g+i}, v{ANG+i}")
            for i in range(8): a(f"v_sin_f32 v{Sb+8*g+i}, v{ANG+i}")
        return f
    a(f"v_mul_f32 v{ST}, {fhex(1/2048)}, v{TR}")
    a(f"v_mul_f32 v{ST5}, {fhex(5.0)}, v{ST}")
    a(f"v_mul_f32 v{SA}, v{TR+3}, v{ST}")
    gen_angles(a, 16, SA, ST, ST5, ANG, cons_tw(T1C, T1S))
    for t in range(4):
        a(f"s_waitcnt vmcnt({4 + 2*(3-t)})")
        a(f"{M} {vr(AR,16)}, {vr(XR+4*t,4)}, {vr(C64+4*t,4)}, {vr(AR,16) if t else 0}")
        a(f"{M} {vr(AI,16)}, {vr(XI+4*t,4)}, {vr(C64+4*t,4)}, {vr(AI,16) if t else 0}")
        a(f"{M} {vr(AR,16)}, {vr(XI+4*t,4)}, {vr(S64+4*t,4)}, {vr(AR,16)}")
        a(f"{M} {vr(AI,16)}, {vr(XR+4*t,4)}, {vr(NS64+4*t,4)}, {vr(AI,16)}")
        if t == 0:
            a(f"v_mul_f32 v{ST}, {fhex(1/32)}, v{TR+1}")
            a(f"v_mul_f32 v{ST5}, {fhex(5.0)}, v{ST}")
            a(f"v_mul_f32 v{SA}, v{TR+3}, v{ST}")
    gen_angles(a, 16, SA, ST, ST5, ANG, cons_mat(C32, S32, NS32))
    a(f"v_mul_f32 v{ST}, {fhex(1/2048)}, v{TR+1}")
    a(f"v_mul_f32 v{ST5}, {fhex(5.0)}, v{ST}")
    a(f"v_mul_f32 v{SA}, v{TR+2}, v{ST}")
    gen_angles(a, 16, SA, ST, ST5, ANG, cons_tw(T2C, T2S))
    a(f"s_mov_b32 s26, {fhex(2.0/(2048*640))}")
    for i in range(16):
        a(f"v_pk_mul_f32 {vr(T2C+2*i,2)}, {vr(T2C+2*i,2)}, s[26:27] op_sel_hi:[1,0]")
    cmul_pk(a, TR, TI, AR, AI, T1C, T1S, -1)
    OR_, OI_ = 8, 16
    cvt16(a, OR_, TR); cvt16(a, OI_, TI)
    for t in range(2):
        a(f"{M} {vr(AR,16)}, {vr(C32+4*t,4)}, {vr(OR_+4*t,4)}, {vr(AR,16) if t else 0}")
        a(f"{M} {vr(AI,16)}, {vr(C32+4*t,4)}, {vr(OI_+4*t,4)}, {vr(AI,16) if t else 0}")
        a(f"{M} {vr(AR,16)}, {vr(S32+4*t,4)}, {vr(OI_+4*t,4)}, {vr(AR,16)}")
        a(f"{M} {vr(AI,16)}, {vr(NS32+4*t,4)}, {vr(OR_+4*t,4)}, {vr(AI,16)}")
    a("s_waitcnt vmcnt(0)")
    for i in range(16):
        a(f"v_lshlrev_b32 v{T1C+i}, 16, v{WT+i}")
        a(f"v_and_b32 v{T1S+i}, 0xffff0000, v{WT+i}")
    cmul_pk(a, TR, TI, AR, AI, T1C, T1S, +1)
    cvt16(a, OR_, TR); cvt16(a, OI_, TI)
    for t in range(2):
        a(f"{M} {vr(AR,16)}, {vr(OR_+4*t,4)}, {vr(C32+4*t,4)}, {vr(AR,16) if t else 0}")
        a(f"{M} {vr(AI,16)}, {vr(OI_+4*t,4)}, {vr(C32+4*t,4)}, {vr(AI,16) if t else 0}")
        a(f"{M} {vr(AR,16)}, {vr(OI_+4*t,4)}, {vr(NS32+4*t,4)}, {vr(AR,16)}")
        a(f"{M} {vr(AI,16)}, {vr(OR_+4*t,4)}, {vr(S32+4*t,4)}, {vr(AI,16)}")
    a("v_add_u32 v4, s22, v3")
    a("v_xor_b32 v5, 0x1000, v4")
    a("v_lshlrev_b32 v6, 7, v6")
    a("v_lshrrev_b32 v7, 5, v1")
    a("v_lshl_add_u32 v6, v7, 4, v6")
    cmul_pk(a, TR, TI, AR, AI, T2C, T2S, +1)
    cvt16(a, OR_, TR); cvt16(a, OI_, TI)
    for i in range(4):
        a(f"ds_write_b128 v4, {vr(8+4*i,4)} offset:{i*1024}")
    def st4(t, r_, i_):
        a(f"{M} {vr(AR,16)}, {vr(r_,4)}, {vr(C64+4*t,4)}, {vr(AR,16) if t else 0}")
        a(f"{M} {vr(AI,16)}, {vr(i_,4)}, {vr(C64+4*t,4)}, {vr(AI,16) if t else 0}")
        a(f"{M} {vr(AR,16)}, {vr(i_,4)}, {vr(NS64+4*t,4)}, {vr(AR,16)}")
        a(f"{M} {vr(AI,16)}, {vr(r_,4)}, {vr(S64+4*t,4)}, {vr(AI,16)}")
    st4(0, OR_, OI_)
    a("s_waitcnt lgkmcnt(0)")
    a("s_barrier")
    for i in range(4):
        a(f"ds_read_b128 {vr(24+4*i,4)}, v5 offset:{i*1024}")
    st4(1, OR_+4, OI_+4)
    a("s_waitcnt lgkmcnt(0)")
    st4(2, 24, 32)
    st4(3, 28, 36)
    for q in range(4):
        O = TR + 4*q
        a(f"v_cvt_pk_bf16_f32 v{O}, v{AR+4*q}, v{AR+4*q+1}")
        a(f"v_cvt_pk_bf16_f32 v{O+1}, v{AR+4*q+2}, v{AR+4*q+3}")
        a(f"v_cvt_pk_bf16_f32 v{O+2}, v{AI+4*q}, v{AI+4*q+1}")
        a(f"v_cvt_pk_bf16_f32 v{O+3}, v{AI+4*q+2}, v{AI+4*q+3}")
    for q in range(4):
        O = TR + 4*q
        a(f"v_permlane32_swap_b32 v{O}, v{O+2}")
        a(f"v_permlane32_swap_b32 v{O+1}, v{O+3}")
        a(f"buffer_store_dwordx4 {vr(O,4)}, v6, s[28:31], s21 offen offset:{q*32}")
    stamp_end(a, 1, name)
    a("s_endpgm")
    a("K2_P:")
    a("s_cmp_ge_u32 s2, 384")
    a("s_cbranch_scc1 K2_end")
    a("s_and_b32 s21, s2, 1")
    a("s_sub_u32 s22, s2, 320\ns_lshr_b32 s22, s22, 3")
    a(f"s_mul_i32 s23, s22, {80*3456}\ns_mul_i32 s24, s21, 1792\ns_add_u32 s23, s23, s24")
    a(f"s_mul_i32 s25, s22, {216*1280}\ns_mul_i32 s24, s21, 640\ns_add_u32 s25, s25, s24")
    a("v_lshrrev_b32 v2, 4, v0\nv_and_b32 v3, 15, v0\nv_lshlrev_b32 v3, 7, v3")
    a("v_mul_u32_u24 v2, 0xd80, v2\nv_add_u32 v2, v2, v3")
    a("v_lshrrev_b32 v4, 3, v0\nv_and_b32 v5, 7, v0\nv_min_u32 v5, 4, v5\nv_lshlrev_b32 v5, 7, v5")
    a("v_mul_u32_u24 v4, 0x500, v4\nv_add_u32 v4, v4, v5")
    a("s_waitcnt lgkmcnt(0)")
    srd(a, 8, 4, 0, 640*3456)
    srd(a, 12, 36, 0, 1728*1280)
    srd(a, 28, 6, 0, 3456)
    srd(a, 32, 38, 0, 1280)
    a("v_lshlrev_b32 v7, 7, v0")
    a("buffer_load_dword v6, v7, s[28:31], 0 offen")
    a("buffer_load_dword v6, v7, s[32:35], 0 offen")
    for i in range(10):
        a(f"buffer_load_dword v6, v2, s[8:11], s23 offen")
        a(f"s_add_u32 s23, s23, {8*3456}")
    for i in range(14):
        a(f"buffer_load_dword v6, v4, s[12:15], s25 offen")
        a(f"s_add_u32 s25, s25, {16*1280}")
    stamp_end(a, 1, name)
    a("K2_end:")
    a("s_endpgm")
    return name, 256, "grid=(384,1,1) block=(128,1,1) lds=8192"

def k3(a):
    name = "k3_kernel"
    YOFF = 12288
    a(kernel_begin(name))
    stamp_begin(a)
    a("s_load_dwordx2 s[18:19], s[0:1], 80")
    a("s_load_dwordx2 s[4:5], s[0:1], 0")
    a("v_lshrrev_b32 v2, 6, v0")
    a("v_and_b32 v1, 63, v0")
    a("v_readfirstlane_b32 s20, v2")
    if STAMP: a("s_mov_b32 s87, s20")
    a("s_cmp_ge_u32 s2, 256")
    a("s_cbranch_scc1 K3_end")
    a("s_and_b32 s21, s2, 7\ns_lshl_b32 s21, s21, 5\ns_lshr_b32 s22, s2, 3\ns_add_u32 s21, s21, s22")
    a("s_lshl_b32 s22, s21, 5")
    a("v_and_b32 v53, 15, v1")
    a("v_lshrrev_b32 v54, 4, v1")
    a("s_lshl_b32 s24, s20, 4")
    a("v_add_u32 v50, s24, v53")
    a("v_lshlrev_b32 v51, 2, v54")
    a(f"s_mov_b32 s26, {CS}")
    COL, FLIP = 116, 121
    col_tables(a, 50, COL, FLIP, 51, 100, 101, 102, 20, 26)
    a("s_cmp_lg_u32 s20, 0")
    a("s_cbranch_scc1 K3_nosp1")
    set_exec_n0(a)
    col_tables_special(a, COL, FLIP, 51)
    a("s_mov_b64 exec, -1")
    a("K3_nosp1:")
    a("s_waitcnt lgkmcnt(0)")
    srd(a, 8, 18, Z_OFF, COLBYTES)
    for k in range(5):
        a(f"buffer_load_dword v{2+2*k}, v{COL+k}, s[8:11], s22 offen")
        a(f"buffer_load_dword v{3+2*k}, v{COL+k}, s[8:11], s22 offen offset:16")
    srd(a, 12, 4, 0, 2048*1280)
    a("v_lshrrev_b32 v55, 5, v1")
    a("v_and_b32 v56, 31, v1")
    a("v_mul_u32_u24 v57, 0x500, v55")
    a("v_lshl_add_u32 v126, v56, 3, v57")
    a("s_lshl_b32 s23, s21, 3\ns_lshl_b32 s24, s20, 1\ns_add_u32 s23, s23, s24\ns_mul_i32 s23, s23, 1280")
    for i in range(5):
        a(f"buffer_load_dwordx2 {vr(12+2*i,2)}, v126, s[12:15], s23 offen offset:{i*256}")
    srd(a, 28, 18, HR_OFF, 2048*1280)
    srd(a, 32, 18, A2_OFF, 2048*1280)
    a("v_lshrrev_b32 v57, 3, v56\nv_lshlrev_b32 v57, 10, v57")
    a("v_and_b32 v58, 3, v56\nv_lshl_add_u32 v57, v58, 8, v57")
    a("v_lshl_add_u32 v57, v55, 4, v57")
    a("v_and_b32 v58, 4, v56\nv_lshl_add_u32 v127, v58, 1, v57")
    a("s_lshr_b32 s50, s21, 1\ns_mul_i32 s50, s50, 20480")
    a("s_and_b32 s24, s21, 1\ns_lshl_b32 s24, s24, 7\ns_add_u32 s50, s50, s24")
    a("s_lshl_b32 s24, s20, 5\ns_add_u32 s50, s50, s24")
    for i in range(1, 5): a(f"s_add_u32 s{50+i}, s{49+i}, 4096")
    a(f"s_mul_i32 s24, s20, {656*4}\ns_add_u32 s24, s24, {YOFF}")
    a("v_lshl_add_u32 v62, v56, 4, s24")
    a("v_mul_u32_u24 v63, 0x202, v55\nv_lshlrev_b32 v63, 16, v63\nv_add_u32 v63, 0x01000c0c, v63")
    a("v_lshrrev_b32 v57, 2, v53\nv_xor_b32 v57, v57, v54\nv_lshlrev_b32 v57, 3, v57")
    a("v_lshl_add_u32 v60, v50, 5, v57")
    a("v_and_b32 v57, 3, v1\nv_xor_b32 v57, v57, v54\nv_lshlrev_b32 v57, 3, v57")
    a("v_lshrrev_b32 v58, 2, v1\nv_lshl_add_u32 v61, v58, 5, v57")
    a("s_lshl_b32 s24, s20, 5")
    a("v_add_u32 v52, s24, v53")
    a("v_mul_u32_u24 v57, 20, v52")
    a(f"v_mul_u32_u24 v58, {656*4}, v54")
    a(f"v_add_u32 v58, {YOFF}, v58")
    for tile in range(2):
        for aa in range(5):
            k = 512*aa + 320*tile
            if aa == 0:
                a(f"v_add3_u32 v{106+5*tile}, v57, v58, {0}" if tile == 0 else f"v_add_u32 v{106+5*tile}, 0x140, v106")
            else:
                a(f"v_add_u32 v59, {k}, v57")
                a(f"v_add_u32 v100, {k-2560}, v57")
                a(f"v_min_u32 v59, v59, v100")
                a(f"v_add_u32 v{106+5*tile+aa}, v59, v58")
    a("v_cvt_f32_u32 v98, v51")
    a("v_lshlrev_b32 v99, 31, v1\nv_or_b32 v99, 0.5, v99")
    for tile in range(2):
        if tile: a("v_add_u32 v52, 16, v52")
        a("v_cvt_f32_u32 v96, v52")
        a(f"v_mul_f32 v96, {fhex(-1.0/128)}, v96")
        a(f"v_mul_f32 v97, {fhex(13.0)}, v96")
        for tp in range(2):
            for i in range(8):
                if tp == 0 and i == 0: a("v_mul_f32 v22, v98, v96")
                else: a(f"v_add_f32 v{22+i}, v{22+(i-1)%8}, v{97 if i%4==0 else 96}")
            for i in range(8): a(f"v_cos_f32 v{30+i}, v{22+i}")
            for i in range(8): a(f"v_sin_f32 v{38+i}, v{22+i}")
            if tp == 0:
                a("s_mov_b64 exec, 0xffff")
                a("v_mov_b32 v30, 0.5")
                a("v_mov_b32 v38, v99")
                a("s_mov_b64 exec, -1")
            for i in range(4): a(f"v_cvt_pk_bf16_f32 v{64+8*tile+4*tp+i}, v{30+2*i}, v{31+2*i}")
            for i in range(4): a(f"v_cvt_pk_bf16_f32 v{80+8*tile+4*tp+i}, v{38+2*i}, v{39+2*i}")
    a(f"s_mov_b32 s40, {fhex(C1)}\ns_mov_b32 s42, {fhex(C2)}\ns_mov_b32 s44, {fhex(S1)}\ns_mov_b32 s46, {fhex(S2)}")
    zr = [22+4*k for k in range(5)]; zi = [24+4*k for k in range(5)]
    for k in range(5):
        a(f"s_waitcnt vmcnt({5 + 8 - 2*k})")
        a(f"v_xor_b32 v{3+2*k}, v{3+2*k}, v{FLIP+k}")
        a(f"v_lshlrev_b32 v{zr[k]}, 16, v{2+2*k}\nv_and_b32 v{zr[k]+1}, 0xffff0000, v{2+2*k}")
        a(f"v_lshlrev_b32 v{zi[k]}, 16, v{3+2*k}\nv_and_b32 v{zi[k]+1}, 0xffff0000, v{3+2*k}")
    P = lambda r: vr(r, 2)
    NEG = "neg_lo:[0,1] neg_hi:[0,1]"
    a("s_cmp_lg_u32 s20, 0")
    a("s_cbranch_scc1 K3_nosp2")
    set_exec_n0(a)
    for (k, kc) in ((1, 4), (2, 3)):
        a(f"v_mov_b32 v2, v{zr[kc]}\nv_mov_b32 v3, v{zr[kc]+1}")
        a(f"v_pk_add_f32 {P(zr[kc])}, {P(zr[k])}, {P(zi[kc])}")
        a(f"v_pk_add_f32 {P(zr[k])}, {P(zr[k])}, {P(zi[kc])} {NEG}")
        a(f"v_pk_add_f32 {P(zi[kc])}, v[2:3], {P(zi[k])} {NEG}")
        a(f"v_pk_add_f32 {P(zi[k])}, {P(zi[k])}, v[2:3]")
    a(f"v_mov_b32 v{zi[0]}, v{zr[0]}\nv_mov_b32 v{zi[0]+1}, v{zr[0]+1}")
    a(f"v_mov_b32 v{zr[0]}, 0\nv_mov_b32 v{zr[0]+1}, 0")
    a("s_mov_b64 exec, -1")
    a("K3_nosp2:")
    T = 128
    t = dft5_core(a, zr, zi, T, 40, 42, 44, 46)
    O = lambda aa, part: 2 + 4*(aa >> 1) + 2*part + (aa & 1)
    a(f"v_cvt_pk_bf16_f32 v{O(0,0)}, v{t['Z0r']}, v{t['Z0r']+1}")
    a(f"v_cvt_pk_bf16_f32 v{O(0,1)}, v{t['Z0i']}, v{t['Z0i']+1}")
    for (k, kc, A, B, base) in ((1, 4, "A1", "B1", T), (2, 3, "A2", "B2", T+8)):
        a(f"v_pk_add_f32 {P(base)}, {P(t[A+'r'])}, {P(t[B+'i'])} {NEG}")
        a(f"v_pk_add_f32 {P(base+2)}, {P(t[A+'i'])}, {P(t[B+'r'])}")
        a(f"v_pk_add_f32 {P(base+4)}, {P(t[A+'r'])}, {P(t[B+'i'])}")
        a(f"v_pk_add_f32 {P(base+6)}, {P(t[A+'i'])}, {P(t[B+'r'])} {NEG}")
        if kc == 4:
            a(f"v_cvt_pk_bf16_f32 v22, v{base+4}, v{base+5}")
            a(f"v_cvt_pk_bf16_f32 v23, v{base+6}, v{base+7}")
        else:
            a(f"v_cvt_pk_bf16_f32 v{O(kc,0)}, v{base+4}, v{base+5}")
            a(f"v_cvt_pk_bf16_f32 v{O(kc,1)}, v{base+6}, v{base+7}")
        a(f"v_cvt_pk_bf16_f32 v{O(k,0)}, v{base}, v{base+1}")
        a(f"v_cvt_pk_bf16_f32 v{O(k,1)}, v{base+2}, v{base+3}")
    for p in range(2):
        for part in range(2):
            a(f"ds_write_b64 v60, {vr(2+4*p+2*part,2)} offset:{p*4096+part*2048}")
    a(f"ds_write_b32 v60, v22 offset:{8192}")
    a(f"ds_write_b32 v60, v23 offset:{8192+2048}")
    a("s_waitcnt lgkmcnt(0)")
    a("s_barrier")
    AF, ACC = 128, 24
    for p in range(3):
        for t4 in range(4):
            for j2 in range(2):
                a(f"ds_read_b64_tr_b16 {vr(AF+16*p+4*t4+2*j2,2)}, v61 offset:{p*4096+t4*1024+j2*512}")
    for p in range(3):
        for t4 in range(4):
            a(f"s_waitcnt lgkmcnt({min(15, 22-2*(4*p+t4))})")
            for tile in range(2):
                acc = vr(ACC+8*p+4*tile, 4)
                B = (64 if t4 < 2 else 80) + 8*tile + 4*(t4 & 1)
                a(f"v_mfma_f32_16x16x32_bf16 {acc}, {vr(AF+16*p+4*t4,4)}, {vr(B,4)}, {acc if t4 else 0}")
    a("s_waitcnt vmcnt(0)")
    XU = 176
    for i in range(10):
        a(f"v_lshlrev_b32 v{XU+2*i}, 16, v{12+i}\nv_and_b32 v{XU+2*i+1}, 0xffff0000, v{12+i}")
    for aa in range(5):
        for tile in range(2):
            r0 = ACC + 8*(aa >> 1) + 4*tile + 2*(aa & 1)
            a(f"v_cvt_pk_bf16_f32 v{2+5*tile+aa}, v{r0}, v{r0+1}")
            a(f"ds_write_b32 v{106+5*tile+aa}, v{2+5*tile+aa}")
    a("s_waitcnt lgkmcnt(0)")
    a("s_barrier")
    Y = 24
    for i in range(5):
        a(f"ds_read_b128 {vr(Y+4*i,4)}, v62 offset:{i*512}")
    for i in range(5):
        a(f"s_waitcnt lgkmcnt({4-i})")
        for e in range(4):
            a(f"v_perm_b32 v{Y+4*i+e}, v{Y+4*i+e}, v{Y+4*i+e}, v63")
        a(f"v_pk_add_f32 {P(Y+4*i)}, {P(Y+4*i)}, {P(XU+4*i)}")
        a(f"v_pk_add_f32 {P(Y+4*i+2)}, {P(Y+4*i+2)}, {P(XU+4*i+2)}")
        a(f"v_cvt_pk_bf16_f32 v{2+2*i}, v{Y+4*i}, v{Y+4*i+1}")
        a(f"v_cvt_pk_bf16_f32 v{3+2*i}, v{Y+4*i+2}, v{Y+4*i+3}")
        a(f"buffer_store_dwordx2 {vr(2+2*i,2)}, v126, s[28:31], s23 offen offset:{i*256}")
    for i in range(10):
        a(f"v_lshlrev_b32 v{Y+2*i}, 16, v{2+i}\nv_and_b32 v{Y+2*i+1}, 0xffff0000, v{2+i}")
    ln_stats(a, Y, 10, 96, 98, 100, 102, 104, 64)
    for i in range(5):
        a(f"v_pk_fma_f32 {P(Y+4*i)}, {P(Y+4*i)}, v[102:103], v[104:105] op_sel_hi:[1,0,0]")
        a(f"v_pk_fma_f32 {P(Y+4*i+2)}, {P(Y+4*i+2)}, v[102:103], v[104:105] op_sel_hi:[1,0,0]")
        a(f"v_cvt_pk_bf16_f32 v{12+2*i}, v{Y+4*i}, v{Y+4*i+1}")
        a(f"v_cvt_pk_bf16_f32 v{13+2*i}, v{Y+4*i+2}, v{Y+4*i+3}")
        a(f"buffer_store_dwordx2 {vr(12+2*i,2)}, v127, s[32:35], s{50+i} offen")
    stamp_end(a, 2, name)
    a("K3_end:")
    a("s_endpgm")
    return name, 196, f"grid=(256,1,1) block=(256,1,1) lds={YOFF+4*656*4}"

class VmQ:
    def __init__(self): self.ops = []
    def issue(self, tag): self.ops.append(tag)
    def need(self, pred):
        last = max((i for i, t in enumerate(self.ops) if pred(t)), default=-1)
        return len(self.ops) - 1 - last

def interleave(main, fill, start=0, every=1):
    out = []; fi = 0
    for i, m in enumerate(main):
        out.append(m)
        if i >= start and (i - start) % every == 0 and fi < len(fill):
            out.append(fill[fi]); fi += 1
    out += fill[fi:]
    return out

K4_P = 5
def k4(a):
    name = "k4_kernel"
    M = "v_mfma_f32_16x16x32_bf16"
    ACC, WF, BIAS, AD, TRA = 8, 64, 120, 148, 156
    a(kernel_begin(name))
    stamp_begin(a)
    a("s_load_dwordx2 s[18:19], s[0:1], 80")
    a("s_load_dwordx4 s[4:7], s[0:1], 32")
    a("v_lshrrev_b32 v2, 6, v0")
    a("v_and_b32 v1, 63, v0")
    a("v_readfirstlane_b32 s20, v2")
    if STAMP: a("s_mov_b32 s87, s20")
    a("s_cmp_ge_u32 s2, 256")
    a("s_cbranch_scc1 K4_end")
    a("s_and_b32 s21, s2, 7\ns_lshr_b32 s22, s2, 3")
    a("s_lshr_b32 s23, s21, 1\ns_lshl_b32 s23, s23, 2\ns_and_b32 s24, s22, 3\ns_add_u32 s23, s23, s24")
    a("s_and_b32 s24, s21, 1\ns_lshl_b32 s24, s24, 3\ns_lshr_b32 s25, s22, 2\ns_add_u32 s24, s24, s25")
    a("s_mul_i32 s24, s24, 7\ns_min_u32 s24, s24, 101")
    a("s_lshl_b32 s23, s23, 3\ns_lshl_b32 s25, s20, 1\ns_add_u32 s23, s23, s25")
    a("s_mul_i32 s26, s23, 20480")
    a("s_lshl_b32 s27, s24, 5")
    a("s_lshl_b32 s28, s20, 10")
    a("s_lshl_b32 s25, s20, 6")
    a("v_add_u32 v2, s25, v1")
    for e in range(7):
        if e: a("v_add_u32 v2, 0x100, v2")
        a("v_mul_u32_u24 v3, 0x124a, v2\nv_lshrrev_b32 v3, 16, v3")
        a("v_mul_u32_u24 v4, 14, v3\nv_sub_u32 v4, v2, v4")
        a("v_mul_u32_u24 v3, 0xd80, v3")
        a(f"v_lshl_add_u32 v{AD+e}, v4, 4, v3")
    a("v_lshlrev_b32 v5, 4, v1")
    a("v_add_u32 v6, 0x5000, v5")
    a("v_lshrrev_b32 v7, 4, v1\nv_lshlrev_b32 v7, 3, v7")
    a("s_waitcnt lgkmcnt(0)")
    srd(a, 8, 4, 0, 640*3456)
    srd(a, 12, 6, 0, 3456)
    srd(a, 32, 18, A2_OFF, 2048*1280)
    q = VmQ()
    RAWB = WF + 28
    for t in range(7):
        a(f"buffer_load_dwordx2 {vr(RAWB+2*t,2)}, v7, s[12:15], s27 offen offset:{32*t}"); q.issue(("bias",))
    Q = lambda kb: -(-7*(kb+1)//4) - 1
    def loads(kb):
        ins = []
        for rho in range(2):
            off = (kb & 3) * 1024
            ins.append(([f"buffer_load_dwordx4 {ar(8*kb+4*rho,4)}, v{5+rho}, s[32:35], s26 offen offset:{off}"]
                        + (["s_add_u32 s26, s26, 4096"] if (rho == 1 and (kb & 3) == 3) else []), ("act", kb)))
        for qq in range(Q(kb-1)+1 if kb else 0, Q(kb)+1):
            pre = [f"s_add_u32 m0, s28, {qq*4096}"]
            if qq and qq % 7 == 0: pre = [f"s_add_u32 s27, s27, {128*3456}"] + pre
            ins.append((pre + [f"buffer_load_dwordx4 v{AD+qq%7}, s[8:11], s27 offen lds"], ("dma", qq)))
        return ins
    def emit_load(x):
        for l in x[0]: a(l)
        q.issue(x[1])
    for kb in range(K4_P):
        for x in loads(kb): emit_load(x)
    srd(a, 36, 18, H_OFF, 2048*3456)
    a("v_lshrrev_b32 v2, 2, v1\nv_mul_u32_u24 v2, 0xe0, v2\nv_and_b32 v3, 3, v1")
    a(f"v_lshl_add_u32 v{TRA}, v3, 3, v2")
    a(f"v_add_u32 v{TRA+1}, {8*7168}, v{TRA}\nv_add_u32 v{TRA+2}, {16*7168}, v{TRA}")
    a("s_mul_i32 s29, s23, 55296")
    for t in range(7):
        a(f"s_add_u32 s30, s24, {t}\ns_lshr_b32 s31, s30, 1\ns_lshl_b32 s31, s31, 10\ns_and_b32 s30, s30, 1\ns_lshl_b32 s30, s30, 3")
        a(f"s_add_u32 s31, s31, s30\ns_add_u32 s{40+t}, s31, s29")
    a("v_add_u32 v4, 0xd800, v5")
    a(f"s_waitcnt vmcnt({q.need(lambda t: t[0]=='bias')})")
    for t in range(14):
        a(f"v_lshlrev_b32 v{BIAS+2*t}, 16, v{RAWB+t}\nv_and_b32 v{BIAS+2*t+1}, 0xffff0000, v{RAWB+t}")
    def trreads(kb):
        buf = WF + 28*(kb & 1)
        return [f"ds_read_b64_tr_b16 {vr(buf+4*t+2*j2,2)}, v{TRA+kb//8} offset:{(kb%8)*7168+j2*3584+t*32}"
                for t in range(7) for j2 in range(2)]
    def sync_for(kb):
        n = q.need(lambda t: (t[0] == "act" and t[1] <= kb) or (t[0] == "dma" and t[1] <= Q(kb)))
        a(f"s_waitcnt vmcnt({n})")
        a("s_barrier")
    sync_for(0)
    for l in trreads(0): a(l)
    for kb in range(20):
        buf = WF + 28*(kb & 1)
        if kb < 19: sync_for(kb+1)
        a("s_waitcnt lgkmcnt(0)")
        mf = []
        for t in range(7):
            for rho in range(2):
                acc = vr(ACC+28*rho+4*t, 4)
                c = acc if kb else vr(BIAS+4*t, 4)
                mf.append(("i", f"{M} {acc}, {vr(buf+4*t,4)}, {ar(8*kb+4*rho,4)}, {c}"))
        if kb < 19:
            seq = interleave(mf, [("i", l) for l in trreads(kb+1)])
            if kb + K4_P < 20:
                seq = interleave(seq, [("l", x) for x in loads(kb+K4_P)], start=2, every=6)
            for k_, x in seq:
                if k_ == "i": a(x)
                else: emit_load(x)
        else:
            def epi(t, rho):
                r0 = ACC+28*rho+4*t
                o = WF + 28*((kb+1) & 1) + 8*((2*t+rho) % 3)
                L = [f"v_max_f32 v{o+i}, 0, v{r0+i}" for i in range(4)]
                L += [f"v_pk_mul_f32 {vr(o+2*i,2)}, {vr(o+2*i,2)}, {vr(o+2*i,2)}" for i in range(2)]
                L += [f"v_cvt_pk_bf16_f32 v{o+4+i}, v{o+2*i}, v{o+2*i+1}" for i in range(2)]
                L += [f"buffer_store_dwordx2 {vr(o+4,2)}, v{5 if rho == 0 else 4}, s[36:39], s{40+t} offen"]
                return L
            LAG = 3
            for i in range(14 + LAG):
                if i < 14: a(mf[i][1])
                if i >= LAG:
                    for l in epi((i-LAG)//2, (i-LAG) % 2): a(l)
    stamp_end(a, 3, name)
    a("K4_end:")
    a("s_endpgm")
    return name, (160, 160), "grid=(256,1,1) block=(256,1,1) lds=143360"

K5_D = 4
def k5(a):
    name = "k5_kernel"
    D = K5_D
    M = "v_mfma_f32_16x16x32_bf16"
    ACC, WF, INIT, AD, VH = 8, 88, 128, 148, 154
    a(kernel_begin(name))
    stamp_begin(a)
    a("s_load_dwordx2 s[18:19], s[0:1], 80")
    a("s_load_dwordx4 s[4:7], s[0:1], 48")
    a("s_load_dwordx2 s[16:17], s[0:1], 64")
    a("v_lshrrev_b32 v2, 6, v0")
    a("v_and_b32 v1, 63, v0")
    a("v_readfirstlane_b32 s20, v2")
    if STAMP: a("s_mov_b32 s87, s20")
    a("s_cmp_ge_u32 s2, 256")
    a("s_cbranch_scc1 K5_end")
    a("s_and_b32 s21, s2, 7\ns_lshr_b32 s22, s2, 3")
    a("s_lshr_b32 s23, s21, 1\ns_lshl_b32 s23, s23, 3\ns_and_b32 s24, s22, 7\ns_add_u32 s23, s23, s24")
    a("s_and_b32 s24, s21, 1\ns_lshl_b32 s24, s24, 2\ns_lshr_b32 s25, s22, 3\ns_add_u32 s24, s24, s25")
    a("s_mul_i32 s24, s24, 160")
    a(f"s_mul_i32 s26, s23, {4*55296}\ns_lshl_b32 s25, s20, 10\ns_add_u32 s26, s26, s25")
    a("s_mul_i32 s27, s20, 40960\ns_add_u32 s27, s27, s24")
    a(f"s_mul_i32 s28, s20, {D*5120}")
    a("v_mov_b32 v2, v1")
    for e in range(5):
        if e: a("v_add_u32 v2, 64, v2")
        a("v_mul_u32_u24 v3, 0x199a, v2\nv_lshrrev_b32 v3, 16, v3")
        a("v_mul_u32_u24 v4, 10, v3\nv_sub_u32 v4, v2, v4")
        a("v_mul_u32_u24 v3, 0x500, v3")
        a(f"v_lshl_add_u32 v{AD+e}, v4, 4, v3")
    a("v_lshlrev_b32 v5, 4, v1")
    for r in range(4):
        a(f"s_add_u32 s29, s20, {r}\ns_and_b32 s29, s29, 3\ns_mul_i32 s30, s29, 55296")
        a(f"v_add_u32 v{VH+r}, s30, v5")
        if r: a(f"s_mul_i32 s{40+r}, s29, 15360")
    a("v_and_b32 v2, 15, v1\nv_mul_u32_u24 v2, 0x500, v2\nv_lshrrev_b32 v7, 4, v1\nv_lshlrev_b32 v7, 3, v7\nv_add_u32 v6, v2, v7")
    a("s_lshl_b32 s29, s23, 2\ns_add_u32 s29, s29, s20\ns_mul_i32 s29, s29, 20480\ns_add_u32 s29, s29, s24")
    a("s_waitcnt lgkmcnt(0)")
    srd(a, 8, 4, 0, 1728*1280)
    srd(a, 32, 18, H_OFF, 2048*3456)
    srd(a, 36, 18, HR_OFF, 2048*1280)
    srd(a, 12, 6, 0, 1280)
    q = VmQ()
    def hload(s, r):
        L = [f"buffer_load_dwordx4 {ar(16*(s%D)+4*r,4)}, v{VH+r}, s[32:35], s26 offen"]
        if r == 3: L.append("s_add_u32 s26, s26, 4096")
        return (L, ("h", s))
    def dma(s, i):
        L = [f"s_add_u32 m0, s28, {(s%D)*5120+i*1024}", f"buffer_load_dwordx4 v{AD+i}, s[8:11], s27 offen lds"]
        if i == 4: L.append(f"s_add_u32 s27, s27, {4*40960}")
        return (L, ("w", s))
    def emit_load(x):
        for l in x[0]: a(l)
        q.issue(x[1])
    RAW = WF + 20
    for s in range(D):
        for i in range(5): emit_load(dma(s, i))
        for r in range(4): emit_load(hload(s, r))
        if s == 0:
            for t in range(5):
                a(f"buffer_load_dwordx2 {vr(RAW+2*t,2)}, v6, s[36:39], s29 offen offset:{32*t}"); q.issue(("init",))
                a(f"buffer_load_dwordx2 {vr(RAW+10+2*t,2)}, v7, s[12:15], s24 offen offset:{32*t}"); q.issue(("init",))
    srd(a, 44, 16, 0, 2048*1280)
    a("v_lshrrev_b32 v2, 2, v1\nv_mul_u32_u24 v2, 0xa0, v2\nv_and_b32 v3, 3, v1")
    a("v_lshl_add_u32 v2, v3, 3, v2\nv_add_u32 v4, s28, v2")
    def trreads(s):
        buf = WF + 20*(s & 1)
        return [f"ds_read_b64_tr_b16 {vr(buf+4*t+2*j2,2)}, v4 offset:{(s%D)*5120+j2*2560+t*32}"
                for t in range(5) for j2 in range(2)]
    a(f"s_waitcnt vmcnt({q.need(lambda t: t[0] in 'wh' and t[1] <= 0)})")
    for l in trreads(0): a(l)
    a(f"s_waitcnt vmcnt({q.need(lambda t: t[0]=='init')})")
    for i in range(10):
        a(f"v_lshlrev_b32 v{INIT+2*i}, 16, v{RAW+i}\nv_and_b32 v{INIT+2*i+1}, 0xffff0000, v{RAW+i}")
        a(f"v_lshlrev_b32 v2, 16, v{RAW+10+i}\nv_and_b32 v3, 0xffff0000, v{RAW+10+i}")
        a(f"v_pk_add_f32 {vr(INIT+2*i,2)}, {vr(INIT+2*i,2)}, v[2:3]")
    NS = 14
    for s in range(NS):
        buf = WF + 20*(s & 1)
        if s == NS-1:
            a("s_waitcnt vmcnt(0) lgkmcnt(0)")
            a("s_cmp_ge_u32 s20, 2")
            a("s_cbranch_scc1 K5_skip")
        else:
            a(f"s_waitcnt vmcnt({q.need(lambda t: t[0] in 'wh' and t[1] <= s+1)}) lgkmcnt(0)")
        seq = []
        tr = trreads(s+1) if s+1 < NS else []
        dm = [dma(s+D, i) for i in range(5)] if s+D < NS else []
        for ri, r in enumerate((1, 2, 3, 0)):
            for t in range(5):
                acc = vr(ACC+20*r+4*t, 4)
                c = acc if s else (vr(INIT+4*t, 4) if r == 0 else "0")
                seq.append(("i", f"{M} {acc}, {vr(buf+4*t,4)}, {ar(16*(s%D)+4*r,4)}, {c}"))
                k = 5*ri + t
                if k < 10 and tr: seq.append(("i", tr[k]))
                if k % 4 == 1 and dm: seq.append(("l", dm[k//4]))
            if s+D < NS: seq.append(("h", r))
        for k_, x in seq:
            if k_ == "i": a(x)
            elif k_ == "l": emit_load(x)
            else:
                a(f"buffer_load_dwordx4 {ar(16*(s%D)+4*x,4)}, v{VH+x}, s[32:35], s26 offen"); q.issue(("h", s+D))
                if x == 0: a("s_add_u32 s26, s26, 4096")
    a("K5_skip:")
    a("s_barrier")
    for r in range(1, 4):
        a(f"v_add_u32 v2, s{40+r}, v5")
        for t in range(5):
            a(f"ds_write_b128 v2, {vr(ACC+20*r+4*t,4)} offset:{(r-1)*5120+t*1024}")
    a("s_mul_i32 s30, s20, 15360")
    a("v_add_u32 v2, s30, v5")
    a("s_waitcnt lgkmcnt(0)")
    a("s_barrier")
    RB = ACC + 20
    for t in range(5):
        for sidx in range(3):
            a(f"ds_read_b128 {vr(RB+12*t+4*sidx,4)}, v2 offset:{sidx*5120+t*1024}")
    for t in range(5):
        a(f"s_waitcnt lgkmcnt({12-3*t})")
        r0 = ACC + 4*t; b = RB + 12*t
        for i in range(2):
            a(f"v_pk_add_f32 {vr(r0+2*i,2)}, {vr(r0+2*i,2)}, {vr(b+2*i,2)}")
            a(f"v_pk_add_f32 {vr(b+4+2*i,2)}, {vr(b+4+2*i,2)}, {vr(b+8+2*i,2)}")
        for i in range(2):
            a(f"v_pk_add_f32 {vr(r0+2*i,2)}, {vr(r0+2*i,2)}, {vr(b+4+2*i,2)}")
        for i in range(2):
            a(f"v_cvt_pk_bf16_f32 v{WF+2*t+i}, v{r0+2*i}, v{r0+2*i+1}")
        a(f"buffer_store_dwordx2 {vr(WF+2*t,2)}, v6, s[44:47], s29 offen offset:{32*t}")
    stamp_end(a, 4, name)
    a("K5_end:")
    a("s_endpgm")
    return name, (160, 16*D), f"grid=(256,1,1) block=(256,1,1) lds={max(4*D*5120, 61440)}"

KERNELS = [k1, k2, k3, k4, k5]

def main():
    a = Asm()
    infos = []
    for k in KERNELS:
        infos.append(k(a))
    a("CODE_END:")
    a("s_endpgm")
    body = a.finalize()
    hdr = open("cdna_kernels/" + NAME + ".s.ref").read().split("; Override launch")[0]
    hdr += "; generated by a python script (hand-designed kernels); see comments in each stage\n"
    for n, vg, l in infos:
        hdr += f"; @launch kernel={n} {l}\n"
    out = hdr + '.amdgcn_target "amdgcn-amd-amdhsa--gfx950"\n' + body
    for n, vg, l in infos:
        out += (kernel_desc(n, vg[0]+vg[1], accum=vg[0]) if isinstance(vg, tuple) else kernel_desc(n, vg)) + "\n"
    open(sys.argv[1], "w").write(out)
    print("nops inserted:", a.nnops, "lines:", len(out.splitlines()))

if __name__ == "__main__":
    main()
```

```python
import re, struct, math

def f2u(x):
    return struct.unpack("<I", struct.pack("<f", x))[0]
def fhex(x):
    return "0x%08x" % f2u(x)

REG_RE = re.compile(r"^(-?)(?:\|)?([vas])(?:(\d+)|\[(\d+):(\d+)\])(?:\|)?$")
def regs_of(op):
    op = op.strip()
    if op in ("vcc",): return [("s", 106), ("s", 107)]
    if op in ("exec",): return [("s", 126), ("s", 127)]
    if op == "m0": return [("s", 124)]
    m = REG_RE.match(op)
    if not m: return []
    k = m.group(2)
    if m.group(3) is not None: return [(k, int(m.group(3)))]
    return [(k, i) for i in range(int(m.group(4)), int(m.group(5)) + 1)]

TRANS = ("v_exp_f32", "v_log_f32", "v_rcp_f32", "v_rsq_f32", "v_sqrt_f32", "v_sin_f32", "v_cos_f32")

def split_ops(s):
    out = []; depth = 0; cur = ""
    for ch in s:
        if ch == "[": depth += 1
        if ch == "]": depth -= 1
        if ch == "," and depth == 0:
            out.append(cur.strip()); cur = ""
        else: cur += ch
    if cur.strip(): out.append(cur.strip())
    return out

class Ins:
    def __init__(self, text):
        self.text = text
        t = text.split(";")[0].strip()
        self.label = t.endswith(":")
        self.directive = t.startswith(".")
        parts = t.split(None, 1)
        self.mn = parts[0] if parts else ""
        ops = split_ops(parts[1]) if len(parts) > 1 else []
        ops2 = []
        self.mods = ""
        for i, o in enumerate(ops):
            if i == len(ops) - 1 and " " in o:
                a, b = o.split(None, 1); ops2.append(a); self.mods = b
            else: ops2.append(o)
        self.ops = ops2
        mn = self.mn
        self.is_mfma = mn.startswith("v_mfma")
        self.is_valu = mn.startswith("v_") and not self.is_mfma
        self.is_trans = any(mn.startswith(x) for x in TRANS)
        self.is_dpp = "_dpp" in mn or "quad_perm" in self.mods or "row_" in self.mods
        self.is_perml = mn.startswith("v_permlane")
        self.is_rdlane = mn.startswith("v_readlane") or mn.startswith("v_readfirstlane")
        self.is_ds = mn.startswith("ds_")
        self.is_vmem = mn.startswith("buffer_") or mn.startswith("global_")
        self.is_salu = mn.startswith("s_")
        self.is_branch = mn.startswith("s_cbranch") or mn == "s_branch"
        self.lds_dma = self.is_vmem and (" lds" in (" " + self.mods) or "load_lds" in mn)
        w = []; r = []
        R = [regs_of(o) for o in self.ops]
        if self.is_mfma:
            w = R[0]; self.A = R[1]; self.B = R[2]; self.C = R[3]; r = R[1] + R[2] + R[3]
            self.passes = 8 if "32x32" in mn else 4
        elif self.is_valu:
            if self.is_perml:
                w = R[0] + R[1]; r = R[0] + R[1]
            else:
                w = list(R[0]); r = sum(R[1:], [])
                if "_co_" in mn:
                    w += R[1]; r = sum(R[2:], [])
                if mn.startswith("v_fmac") or mn.startswith("v_dot2c") or "d16" in mn: r += R[0]
                if mn.startswith("v_cndmask") and len(self.ops) == 3: r += regs_of("vcc")
                if mn.startswith("v_cmpx"): w += regs_of("exec")
        elif self.is_ds:
            if "read" in mn or "permute" in mn or "swizzle" in mn:
                w = R[0]; r = sum(R[1:], [])
            else: r = sum(R, [])
        elif self.is_vmem:
            if "load" in mn and not self.lds_dma:
                w = R[0]; r = sum(R[1:], [])
            else: r = sum(R, [])
            if self.lds_dma: r += regs_of("m0")
            self.store_wide = ("store_dwordx4" in mn or "store_dwordx3" in mn)
            if self.store_wide:
                self.data = R[0] if mn.startswith("buffer_") else R[1]
        elif self.is_salu:
            if mn.startswith("s_cmp") or self.is_branch or mn in ("s_waitcnt", "s_nop", "s_barrier", "s_endpgm", "s_setprio", "s_sleep"):
                r = sum(R, [])
            elif R:
                w = R[0]; r = sum(R[1:], [])
                if "saveexec" in mn: w = w + regs_of("exec")
        self.w = set(w); self.r = set(r)
    def states(self):
        if self.label or self.directive or not self.mn: return 0
        if self.mn == "s_nop": return int(self.ops[0]) + 1
        return 1

def required(p, c):
    n = 0
    vw = {x for x in p.w if x[0] in "va"}
    sw = {x for x in p.w if x[0] == "s"}
    if p.is_valu:
        if c.is_mfma and vw & c.r: n = max(n, 2)
        if p.is_trans and c.is_valu and not c.is_trans and vw & c.r: n = max(n, 1)
        if p.is_trans and (c.is_mfma) and vw & c.r: n = max(n, 2)
        if c.is_dpp and vw & c.r: n = max(n, 2)
        if c.is_perml and vw & c.r: n = max(n, 2)
        if c.is_rdlane and vw & c.r: n = max(n, 1)
        if c.is_valu and sw & c.r: n = max(n, 4 if c.is_rdlane else 2)
        if c.is_vmem and sw & c.r: n = max(n, 5)
        ex = {("s", 126), ("s", 127)}
        if sw & ex:
            if c.is_dpp: n = max(n, 5)
            if c.is_mfma or c.is_perml or c.is_rdlane: n = max(n, 4)
        if ("op_sel" in p.mods or "sdwa" in p.mn) and not p.mn.startswith("v_pk_") and c.is_valu and vw & c.r: n = max(n, 1)
    if p.is_salu:
        if ("s", 124) in p.w and c.lds_dma: n = max(n, 1)
    if p.is_mfma:
        big = 12 if p.passes == 8 else 8
        if c.is_mfma:
            if p.w & (set(c.A) | set(c.B)): n = max(n, big)
            if p.w & set(c.C):
                if set(c.C) == p.w and c.passes == p.passes: pass
                else: n = max(n, big - 2)
            elif p.w & c.w: n = max(n, big)
        elif (c.is_valu or c.is_ds or c.is_vmem) and (p.w & (c.r | c.w)): n = max(n, big)
        if c.is_valu and set(p.C) & c.w: n = max(n, 7 if p.passes == 8 else 3)
    if p.is_vmem and getattr(p, "store_wide", False):
        if set(p.data) & c.w: n = max(n, 2)
    return n

class Asm:
    def __init__(self):
        self.lines = []
        self.vm = []
        self.pend = []
        self.period = 0; self.cnt = 0; self.budget = 0
    def _emit(self, l, tag):
        self.lines.append(l)
        m = l.split()[0]
        if (m.startswith("buffer_") or m.startswith("global_")) and not m.startswith("buffer_inv") :
            self.vm.append(tag)
    def __call__(self, s, tag=None):
        for l in s.split("\n"):
            l = l.strip()
            if not l: continue
            self._emit(l, tag)
            if self.period and not l.endswith(":") and self.pend and self.budget > 0:
                self.cnt += 1
                if self.cnt >= self.period and not l.startswith(("s_cmp", "s_add_u32", "s_sub_u32", "s_bitcmp", "s_waitcnt", "s_cbranch", "s_branch")):
                    self.cnt = 0
                    self.flush(1)
    def flush(self, n):
        for _ in range(n):
            if not self.pend: return
            g, tag = self.pend.pop(0)
            for l in g: self._emit(l, tag)
            self.budget -= 1
    def sprinkle(self, period, budget=10**9):
        self.period = period; self.cnt = 0; self.budget = budget
    def pause(self):
        p = (self.period, self.cnt); self.period = 0; return p
    def resume(self, p):
        self.period, self.cnt = p
    def vmneed(self, pred):
        last = max((i for i, t in enumerate(self.vm) if t is not None and pred(t)), default=-1)
        assert last >= 0
        return min(63, len(self.vm) - 1 - last)
    def waitvm(self, pred, extra=""):
        self(f"s_waitcnt vmcnt({self.vmneed(pred)}) {extra}")
    def finalize(self):
        out = []
        hist = []
        pos = 0
        nnops = 0
        for l in self.lines:
            ins = Ins(l)
            if ins.label or ins.directive or not ins.mn:
                out.append(l); continue
            need = 0
            if ins.is_branch:
                for p, pp in hist:
                    m = 0
                    if p.is_mfma: m = 12 if p.passes == 8 else 8
                    elif p.is_valu: m = 5 if {x for x in p.w if x[0] == "s"} else 2
                    elif p.is_salu and ("s", 124) in p.w: m = 1
                    elif p.is_vmem and getattr(p, "store_wide", False): m = 2
                    need = max(need, m - (pos - pp) - 1)
            else:
                for p, pp in hist:
                    need = max(need, required(p, ins) - (pos - pp))
            while need > 0:
                k = min(need, 16)
                out.append(f"s_nop {k-1}"); pos += k; need -= k; nnops += 1
            out.append(l)
            pos += ins.states()
            hist.append((ins, pos))
            hist = [(p, pp) for p, pp in hist if pos - pp < 20]
        self.nnops = nnops
        res = []
        for l in out:
            t = l.split(";")[0].strip()
            res.append(l if (t.endswith(":") or t.startswith(".")) else "    " + l)
        return "\n".join(res) + "\n"

def vr(a, n=1):
    return f"v{a}" if n == 1 else f"v[{a}:{a+n-1}]"
def sr(a, n=1):
    return f"s{a}" if n == 1 else f"s[{a}:{a+n-1}]"
def ar(a, n=1):
    return f"a{a}" if n == 1 else f"a[{a}:{a+n-1}]"

def kernel_begin(name):
    return f""".text
.globl {name}
.p2align 8
.type {name},@function
{name}:"""

def kernel_desc(name, vgpr, sgpr=96, accum=None):
    if accum is None: accum = (vgpr + 3) // 4 * 4
    return f""".section .rodata,"a"
.p2align 6
.amdhsa_kernel {name}
  .amdhsa_next_free_vgpr {vgpr}
  .amdhsa_next_free_sgpr {sgpr}
  .amdhsa_accum_offset {accum}
  .amdhsa_group_segment_fixed_size 0
  .amdhsa_kernarg_size 88
  .amdhsa_user_sgpr_count 2
  .amdhsa_user_sgpr_kernarg_segment_ptr 1
  .amdhsa_system_sgpr_workgroup_id_x 1
.end_amdhsa_kernel"""
```

```python
import math
from asmlib import *

def srd(a, d, base, off, size):
    if off:
        a(f"s_add_u32 s{d}, s{base}, {off}")
        a(f"s_addc_u32 s{d+1}, s{base+1}, 0")
    else:
        if d != base:
            a(f"s_mov_b32 s{d}, s{base}")
            a(f"s_mov_b32 s{d+1}, s{base+1}")
    a(f"s_mov_b32 s{d+2}, {size}")
    a(f"s_mov_b32 s{d+3}, 0x20000")

def reduce32(a, v, t):
    a(f"v_add_f32_dpp v{v}, v{v}, v{v} quad_perm:[1,0,3,2] row_mask:0xf bank_mask:0xf")
    a(f"v_add_f32_dpp v{v}, v{v}, v{v} quad_perm:[2,3,0,1] row_mask:0xf bank_mask:0xf")
    a(f"v_add_f32_dpp v{v}, v{v}, v{v} row_half_mirror row_mask:0xf bank_mask:0xf")
    a(f"v_add_f32_dpp v{v}, v{v}, v{v} row_mirror row_mask:0xf bank_mask:0xf")
    a(f"v_mov_b32 v{t}, v{v}")
    a(f"v_permlane16_swap_b32 v{v}, v{t}")
    a(f"v_add_f32 v{v}, v{v}, v{t}")

def round_bf16(a, v):
    a(f"v_cvt_pk_bf16_f32 v{v}, v{v}, v{v}")
    a(f"v_lshlrev_b32 v{v}, 16, v{v}")

def ln_stats(a, X, npair, vs, vt, vmean, vr_, vc, D):
    a(f"v_pk_add_f32 {vr(vs,2)}, {vr(X,2)}, {vr(X+2,2)}")
    a(f"v_pk_add_f32 {vr(vt,2)}, {vr(X+4,2)}, {vr(X+6,2)}")
    for i in range(4, npair):
        d = vs if i % 2 == 0 else vt
        a(f"v_pk_add_f32 {vr(d,2)}, {vr(d,2)}, {vr(X+2*i,2)}")
    a(f"v_pk_add_f32 {vr(vs,2)}, {vr(vs,2)}, {vr(vt,2)}")
    a(f"v_add_f32 v{vmean}, v{vs}, v{vs+1}")
    reduce32(a, vmean, vt)
    a(f"v_mul_f32 v{vmean}, {fhex(1.0/640)}, v{vmean}")
    for i in range(npair):
        a(f"v_pk_add_f32 {vr(D+2*i,2)}, {vr(X+2*i,2)}, {vr(vmean,2)} op_sel_hi:[1,0] neg_lo:[0,1] neg_hi:[0,1]")
    a(f"v_pk_mul_f32 {vr(vs,2)}, {vr(D,2)}, {vr(D,2)}")
    a(f"v_pk_mul_f32 {vr(vt,2)}, {vr(D+2,2)}, {vr(D+2,2)}")
    for i in range(2, npair):
        d = vs if i % 2 == 0 else vt
        a(f"v_pk_fma_f32 {vr(d,2)}, {vr(D+2*i,2)}, {vr(D+2*i,2)}, {vr(d,2)}")
    a(f"v_pk_add_f32 {vr(vs,2)}, {vr(vs,2)}, {vr(vt,2)}")
    a(f"v_add_f32 v{vr_}, v{vs}, v{vs+1}")
    reduce32(a, vr_, vt)
    a(f"v_mul_f32 v{vr_}, {fhex(1.0/640)}, v{vr_}")
    round_bf16(a, vr_)
    a(f"v_add_f32 v{vr_}, {fhex(1e-5)}, v{vr_}")
    round_bf16(a, vr_)
    a(f"v_sqrt_f32 v{vr_}, v{vr_}")
    round_bf16(a, vmean)
    round_bf16(a, vr_)
    a(f"v_rcp_f32 v{vr_}, v{vr_}")
    a(f"v_mul_f32 v{vc}, v{vmean}, v{vr_}")
    a(f"v_sub_f32 v{vc}, 0, v{vc}")

C1, C2, S1, S2 = math.cos(2*math.pi/5), math.cos(4*math.pi/5), math.sin(2*math.pi/5), math.sin(4*math.pi/5)

def dft5_core(a, zr, zi, T, sc1, sc2, ss1, ss2):
    t = {}
    names = ["t1r","t1i","t2r","t2i","t3r","t3i","t4r","t4i","A1r","A1i","A2r","A2i","B1r","B1i","B2r","B2i","Z0r","Z0i"]
    for i, n in enumerate(names): t[n] = T + 2*i
    P = lambda r: vr(r, 2)
    for c, z in (("r", zr), ("i", zi)):
        a(f"v_pk_add_f32 {P(t['t1'+c])}, {P(z[1])}, {P(z[4])}")
        a(f"v_pk_add_f32 {P(t['t2'+c])}, {P(z[2])}, {P(z[3])}")
        a(f"v_pk_add_f32 {P(t['t3'+c])}, {P(z[1])}, {P(z[4])} neg_lo:[0,1] neg_hi:[0,1]")
        a(f"v_pk_add_f32 {P(t['t4'+c])}, {P(z[2])}, {P(z[3])} neg_lo:[0,1] neg_hi:[0,1]")
    for c, z in (("r", zr), ("i", zi)):
        a(f"v_pk_fma_f32 {P(t['A1'+c])}, {P(t['t1'+c])}, {sr(sc1,2)}, {P(z[0])} op_sel_hi:[1,0,1]")
        a(f"v_pk_fma_f32 {P(t['A2'+c])}, {P(t['t1'+c])}, {sr(sc2,2)}, {P(z[0])} op_sel_hi:[1,0,1]")
        a(f"v_pk_mul_f32 {P(t['B1'+c])}, {P(t['t3'+c])}, {sr(ss1,2)} op_sel_hi:[1,0]")
        a(f"v_pk_mul_f32 {P(t['B2'+c])}, {P(t['t3'+c])}, {sr(ss2,2)} op_sel_hi:[1,0]")
        a(f"v_pk_add_f32 {P(t['Z0'+c])}, {P(t['t1'+c])}, {P(z[0])}")
    for c, z in (("r", zr), ("i", zi)):
        a(f"v_pk_fma_f32 {P(t['A1'+c])}, {P(t['t2'+c])}, {sr(sc2,2)}, {P(t['A1'+c])} op_sel_hi:[1,0,1]")
        a(f"v_pk_fma_f32 {P(t['A2'+c])}, {P(t['t2'+c])}, {sr(sc1,2)}, {P(t['A2'+c])} op_sel_hi:[1,0,1]")
        a(f"v_pk_fma_f32 {P(t['B1'+c])}, {P(t['t4'+c])}, {sr(ss2,2)}, {P(t['B1'+c])} op_sel_hi:[1,0,1]")
        a(f"v_pk_fma_f32 {P(t['B2'+c])}, {P(t['t4'+c])}, {sr(ss1,2)}, {P(t['B2'+c])} op_sel_hi:[1,0,1] neg_lo:[1,0,0] neg_hi:[1,0,0]")
        a(f"v_pk_add_f32 {P(t['Z0'+c])}, {P(t['Z0'+c])}, {P(t['t2'+c])}")
    return t

def gen_angles(a, n, start, step, step5, tmp, consume):
    for gidx in range(n // 8):
        for i in range(8):
            if gidx == 0 and i == 0: a(f"v_mov_b32 v{tmp}, v{start}")
            else:
                prev = tmp + (i - 1) % 8
                a(f"v_add_f32 v{tmp+i}, v{prev}, v{step5 if i % 4 == 0 else step}")
        consume(gidx)

def cmul_pk(a, outr, outi, xr, xi, c, s, sign):
    for i in range(8):
        o = 2*i
        a(f"v_pk_mul_f32 {vr(outr+o,2)}, {vr(xr+o,2)}, {vr(c+o,2)}")
        a(f"v_pk_mul_f32 {vr(outi+o,2)}, {vr(xi+o,2)}, {vr(c+o,2)}")
    for i in range(8):
        o = 2*i
        n1 = " neg_lo:[1,0,0] neg_hi:[1,0,0]" if sign > 0 else ""
        n2 = " neg_lo:[1,0,0] neg_hi:[1,0,0]" if sign < 0 else ""
        a(f"v_pk_fma_f32 {vr(outr+o,2)}, {vr(xi+o,2)}, {vr(s+o,2)}, {vr(outr+o,2)}{n1}")
        a(f"v_pk_fma_f32 {vr(outi+o,2)}, {vr(xr+o,2)}, {vr(s+o,2)}, {vr(outi+o,2)}{n2}")

def cvt16(a, dst, src):
    for i in range(8):
        a(f"v_cvt_pk_bf16_f32 v{dst+i}, v{src+2*i}, v{src+2*i+1}")

def interleave(main, fill, start=0, every=1):
    out = []; fi = 0
    for i, m in enumerate(main):
        out.append(m)
        if i >= start and (i - start) % every == 0 and fi < len(fill):
            out.append(fill[fi]); fi += 1
    out += fill[fi:]
    return out
```

```python
import sys, math, os
sys.path.insert(0, "dev")
from asmlib import *
from helpers import *

NAME = "sequential_preLN__spectral_gfnet__dense_activation_squared_relu__prompt"
CS = 8320
MB = 1 << 20
COLBYTES = 320 * CS
HRT = 57344
W1F_SZ, W2F_SZ = 108*20480, 32*70*1024
def _al(x): return (x + 65535) // 65536 * 65536
U_OFF = 0
WT_OFF = _al(U_OFF + COLBYTES)
WF_OFF = _al(WT_OFF + COLBYTES)
FL_OFF = _al(WF_OFF + W1F_SZ + W2F_SZ)
Z_OFF = _al(FL_OFF + 40960)
A2_OFF = _al(Z_OFF + COLBYTES)
HR_OFF = _al(A2_OFF + 2048*1280)
H_OFF = _al(HR_OFF + 2048*1280)
STAMP = len(sys.argv) > 2 and sys.argv[2] == "stamp"
STAMP_OFF = 64 * MB
EXP = os.environ.get("EXP", "")
def P_(name, dflt):
    for tok in EXP.split(","):
        if tok.startswith(name + "="): return int(tok.split("=")[1])
    return dflt
NM = 14
MODS = ["", "sc1", "nt", "sc0 sc1", "sc1 nt"]
def stamp_begin(a):
    if STAMP:
        a("s_memrealtime s[96:97]")
        a("s_load_dwordx2 s[94:95], s[0:1], 80")
        for i in range(NM): a(f"s_mov_b32 s{78+i}, -1")
def mark(a, i):
    if STAMP:
        p = a.pause()
        a("s_waitcnt lgkmcnt(0)")
        a(f"s_memrealtime s[92:93]")
        a("s_waitcnt lgkmcnt(0)")
        a(f"s_mov_b32 s{77+i}, s92")
        a.resume(p)
def stamp_end(a, kidx):
    if STAMP:
        a("s_waitcnt vmcnt(0) lgkmcnt(0)")
        a("s_memrealtime s[92:93]")
        a("s_waitcnt lgkmcnt(0)")
        a("s_mov_b32 s77, s92\ns_mov_b32 s76, s96")
        for i in range(16): a(f"v_mov_b32 v{4+i}, s{76+i}")
        a(f"s_lshl_b32 s92, s2, 8\ns_add_u32 s92, s92, {STAMP_OFF + kidx*262144}")
        a("s_lshl_b32 s93, s75, 6\ns_add_u32 s92, s92, s93")
        a("v_mov_b32 v2, s92")
        a("s_mov_b64 exec, 1")
        for i in range(4): a(f"global_store_dwordx4 v2, {vr(4+4*i,4)}, s[94:95] offset:{16*i}")

def set_exec_n0(a):
    a("s_mov_b32 exec_lo, 0x00010001")
    a("s_mov_b32 exec_hi, 0x00010001")

SPECIAL_COL = [0, 256, 128, 192, 64]
SPECIAL_FLIP = [0, 0, 1, 0, 1]
FLIPTAB = sum(1 << (5*r5 + ka) for r5 in range(5) for ka in range(5) if (3*r5 + 2*ka) % 5 >= 3)
def col_tables(a, vkb, vg1, COL, FLIP, vbase, t0, t1, t2, sCS, st):
    a(f"s_mov_b32 s{st}, 0x24130\ns_mov_b32 s{st+1}, {FLIPTAB}")
    a(f"v_mul_u32_u24 v{t0}, 52, v{vkb}")
    a(f"v_lshrrev_b32 v{t0}, 8, v{t0}")
    a(f"v_mul_u32_u24 v{t0}, 5, v{t0}")
    a(f"v_sub_u32 v{t0}, v{vkb}, v{t0}")
    a(f"v_mul_u32_u24 v{t1}, 5, v{t0}")
    a(f"v_lshrrev_b32 v{t1}, v{t1}, s{st+1}")
    for ka in range(5):
        a(f"v_bfe_i32 v{FLIP+ka}, v{t1}, {ka}, 1")
        a(f"v_and_b32 v{FLIP+ka}, 0x80008000, v{FLIP+ka}")
    a(f"v_lshlrev_b32 v{t0}, 2, v{t0}")
    a(f"v_bfe_u32 v{t0}, s{st}, v{t0}, 3")
    a(f"v_lshl_add_u32 v{t0}, v{vg1}, 1, v{t0}")
    a(f"v_add_u32 v{t1}, -5, v{t0}")
    a(f"v_min_u32 v{t0}, v{t0}, v{t1}")
    for T in range(3):
        if T:
            a(f"v_add_u32 v{t1}, 4, v{t0}")
            a(f"v_add_u32 v{t0}, -1, v{t0}")
            a(f"v_min_u32 v{t0}, v{t0}, v{t1}")
        a(f"v_lshl_add_u32 v{t1}, v{t0}, 7, v{vkb}")
        a(f"v_sub_u32 v{t2}, 0x280, v{t1}")
        a(f"v_min_u32 v{t2}, v{t2}, v{t1}")
        a(f"v_mad_u32_u24 v{COL+T}, v{t2}, s{sCS}, v{vbase}")
def col_tables_special(a, vg1, COL, FLIP, vbase, t0):
    for T in range(3):
        A = SPECIAL_COL[2*T]; B = SPECIAL_COL[2*T+1] if T < 2 else A
        a(f"v_mul_u32_u24 v{t0}, {(B-A)*CS}, v{vg1}" if B != A else f"v_mov_b32 v{t0}, 0")
        a(f"v_add_u32 v{t0}, {A*CS}, v{t0}")
        a(f"v_add_u32 v{COL+T}, v{t0}, v{vbase}")
    for ka in range(5):
        a(f"v_mov_b32 v{FLIP+ka}, {'0x80008000' if SPECIAL_FLIP[ka] else 0}")
def transpose4(a, regs):
    for r in regs:
        a(f"v_permlane32_swap_b32 v{r}, v{r+2}")
        a(f"v_permlane32_swap_b32 v{r+1}, v{r+3}")
    for r in regs:
        a(f"v_permlane16_swap_b32 v{r}, v{r+1}")
        a(f"v_permlane16_swap_b32 v{r+2}, v{r+3}")

def k1(a):
    name = "k1_kernel"
    a(kernel_begin(name))
    stamp_begin(a)
    a("s_load_dwordx4 s[4:7], s[0:1], 0")
    a("s_load_dwordx2 s[16:17], s[0:1], 16")
    a("s_load_dwordx2 s[18:19], s[0:1], 80")
    a("s_load_dwordx2 s[48:49], s[0:1], 32")
    a("s_load_dwordx2 s[50:51], s[0:1], 48")
    a("v_lshrrev_b32 v2, 6, v0")
    a("v_and_b32 v1, 63, v0")
    a("v_readfirstlane_b32 s20, v2")
    if STAMP: a("s_mov_b32 s75, s20")
    a("s_cmp_ge_u32 s2, 256")
    a("s_cbranch_scc1 K1_W")
    a("s_lshr_b32 s21, s2, 3")
    a("s_getpc_b64 s[30:31]")
    a("K1_PC:")
    a("s_add_u32 s30, s30, k1_kernel-K1_PC")
    a("s_addc_u32 s31, s31, -1")
    a("s_lshl_b32 s24, s21, 2\ns_add_u32 s24, s24, s20\ns_lshl_b32 s24, s24, 9")
    a("v_lshl_add_u32 v56, v1, 7, s24")
    a("v_min_u32 v56, CODE_END-k1_kernel, v56")
    a("s_mov_b64 exec, 15")
    a("global_load_dword v127, v56, s[30:31]")
    a("s_mov_b64 exec, -1")
    a("s_and_b32 s22, s2, 7")
    a("s_lshr_b32 s23, s22, 1\ns_lshl_b32 s23, s23, 4")
    a("s_and_b32 s24, s22, 1\ns_lshl_b32 s24, s24, 2\ns_add_u32 s23, s23, s24")
    a("s_lshr_b32 s24, s20, 1\ns_lshl_b32 s24, s24, 3\ns_add_u32 s23, s23, s24")
    a("s_and_b32 s24, s20, 1\ns_lshl_b32 s24, s24, 1\ns_add_u32 s23, s23, s24")
    a("s_lshl_b32 s23, s23, 5\ns_add_u32 s23, s23, s21\ns_mul_i32 s23, s23, 1280")
    a("v_lshrrev_b32 v55, 5, v1")
    a("v_and_b32 v53, 31, v1")
    a("v_mul_u32_u24 v54, 0xa000, v55")
    a("v_add_u32 v52, 1, v53\nv_and_b32 v52, 31, v52")
    a("v_mad_u32_u24 v56, v53, 40, v54")
    a("v_mad_u32_u24 v57, v52, 40, v54")
    a("s_waitcnt lgkmcnt(0)")
    srd(a, 8, 4, 0, 2048*1280)
    a("buffer_load_dwordx4 v[2:5], v56, s[8:11], s23 offen", "xa")
    a("buffer_load_dwordx4 v[6:9], v56, s[8:11], s23 offen offset:16", "xa")
    a("buffer_load_dwordx2 v[10:11], v56, s[8:11], s23 offen offset:32", "xa")
    a("buffer_load_dwordx4 v[12:15], v57, s[8:11], s23 offen", "xb")
    a("buffer_load_dwordx2 v[16:17], v57, s[8:11], s23 offen offset:16", "xb")
    srd(a, 12, 18, U_OFF, COLBYTES)
    a("v_lshlrev_b32 v53, 3, v53")
    a("s_lshl_b32 s24, s20, 6")
    a("v_lshl_add_u32 v54, v55, 4, s24")
    a("v_add_u32 v52, 32, v54")
    offs = [0, 20, 7, 26, 13]; aof = [0, 2, 4, 1, 3]
    for r in range(5):
        a(f"v_add_u32 v56, {offs[r]*8}, v53")
        a(f"v_and_b32 v56, 0xf8, v56")
        a(f"v_xor_b32 v57, v56, v{52 if (aof[r]&1) else 54}")
        a(f"v_and_b32 v56, 0xf0, v56")
        a(f"v_lshl_add_u32 v{120+r}, v56, 4, v57")
    a("v_and_b32 v53, 15, v1")
    a("v_lshrrev_b32 v56, 4, v1")
    a("v_xor_b32 v54, v53, v56")
    a("v_lshlrev_b32 v54, 4, v54")
    a("v_lshl_add_u32 v62, v56, 8, v54")
    a("v_xor_b32 v63, 64, v62")
    a("v_xor_b32 v125, 0x80, v62")
    a("v_xor_b32 v126, 0xc0, v62")
    RD = [62, 63, 125, 126]
    a("s_lshl_b32 s24, s20, 4")
    a("v_add_u32 v18, s24, v53")
    a("s_lshl_b32 s25, s22, 10\ns_lshl_b32 s26, s21, 5\ns_add_u32 s25, s25, s26")
    a("v_and_b32 v19, 16, v1\nv_add_u32 v19, s25, v19")
    a(f"s_mov_b32 s26, {CS}")
    a("v_cvt_f32_u32 v96, v18")
    a(f"v_mul_f32 v96, {fhex(-1.0/128)}, v96")
    a("v_cvt_f32_u32 v97, v56")
    a("v_mul_f32 v97, v97, v96")
    a(f"v_mul_f32 v97, {fhex(8.0)}, v97")
    a(f"v_mul_f32 v98, {fhex(25.0)}, v96")
    col_tables(a, 18, 55, 52, 57, 19, 100, 101, 102, 26, 28)
    for t in range(4):
        for i in range(8):
            if i: a(f"v_add_f32 v{100+i}, v{100+i-1}, v96")
            elif t == 0: a("v_mov_b32 v100, v97")
            else: a("v_add_f32 v100, v107, v98")
        for i in range(8):
            a(f"v_cos_f32 v{108+i}, v{100+i}")
        for i in range(4):
            a(f"v_cvt_pk_bf16_f32 v{64+4*t+i}, v{108+2*i}, v{109+2*i}")
        for i in range(8):
            a(f"v_sin_f32 v{108+i}, v{100+i}")
        for i in range(4):
            a(f"v_cvt_pk_bf16_f32 v{80+4*t+i}, v{108+2*i}, v{109+2*i}")
    a("s_cmp_lg_u32 s20, 0")
    a("s_cbranch_scc1 K1_nosp1")
    set_exec_n0(a)
    for i in range(16): a(f"v_mov_b32 v{80+i}, 0xbf803f80")
    col_tables_special(a, 55, 52, 57, 19, 100)
    a("s_mov_b64 exec, -1")
    a("K1_nosp1:")
    a(f"s_mov_b32 s40, {fhex(C1)}\ns_mov_b32 s42, {fhex(C2)}\ns_mov_b32 s44, {fhex(S1)}\ns_mov_b32 s46, {fhex(S2)}")
    mark(a, 1)
    a.waitvm(lambda t: t == "xa")
    mark(a, 2)
    for i in range(10):
        a(f"v_lshlrev_b32 v{20+2*i}, 16, v{2+i}")
        a(f"v_and_b32 v{21+2*i}, 0xffff0000, v{2+i}")
    ln_stats(a, 20, 10, 116, 118, 18, 2, 4, 96)
    a.waitvm(lambda t: t == "xb")
    a("v_and_b32 v41, 0xffff0000, v12")
    a("v_lshlrev_b32 v42, 16, v13\nv_and_b32 v43, 0xffff0000, v13")
    a("v_lshlrev_b32 v46, 16, v15\nv_and_b32 v47, 0xffff0000, v15")
    a("v_and_b32 v51, 0xffff0000, v17")
    for e in (4, 8, 12, 14, 16, 18, 22, 26):
        a(f"v_pk_fma_f32 {vr(20+e,2)}, {vr(20+e,2)}, v[2:3], v[4:5] op_sel_hi:[1,0,0]")
    for e in (0, 10, 21, 31):
        a(f"v_fma_f32 v{20+e}, v{20+e}, v2, v4")
    o_r = [0, 3, 2, 1, 0]
    for r in range(5):
        es = [5*(o_r[r]+i)+r for i in range(4)]
        a(f"v_cvt_pk_bf16_f32 v{96+2*r}, v{20+es[0]}, v{20+es[1]}")
        a(f"v_cvt_pk_bf16_f32 v{97+2*r}, v{20+es[2]}, v{20+es[3]}")
        a(f"ds_write_b64 v{120+r}, {vr(96+2*r,2)} offset:{(aof[r]>>1)*4096}")
    a("s_waitcnt lgkmcnt(0)")
    a("s_barrier")
    mark(a, 3)
    for p in range(3):
        for t in range(4):
            a(f"ds_read_b128 {vr(4+16*p+4*t,4)}, v{RD[t]} offset:{p*4096+t*1024}")
    for p in range(3):
        for t in range(4):
            a(f"s_waitcnt lgkmcnt({11-(4*p+t)})")
            for tile in range(2):
                acc = vr(96+8*p+4*tile, 4)
                a(f"v_mfma_f32_16x16x32_bf16 {acc}, {vr(4+16*p+4*t,4)}, {vr(64+16*tile+4*t,4)}, {acc if t else 0}")
    zr = [96+8*(x>>1)+2*(x&1) for x in range(5)]
    zi = [r+4 for r in zr]
    t = dft5_core(a, zr, zi, 4, 40, 42, 44, 46)
    P = lambda r: vr(r, 2)
    NEG = "neg_lo:[0,1] neg_hi:[0,1]"
    a(f"v_cvt_pk_bf16_f32 v40, v{t['Z0r']}, v{t['Z0r']+1}")
    a(f"v_cvt_pk_bf16_f32 v41, v{t['Z0i']}, v{t['Z0i']+1}")
    for (k, kc, A, B, base) in ((1, 4, "A1", "B1", 4), (2, 3, "A2", "B2", 12)):
        a(f"v_pk_add_f32 {P(base)}, {P(t[A+'r'])}, {P(t[B+'i'])}")
        a(f"v_pk_add_f32 {P(base+2)}, {P(t[A+'i'])}, {P(t[B+'r'])} {NEG}")
        a(f"v_pk_add_f32 {P(base+4)}, {P(t[A+'r'])}, {P(t[B+'i'])} {NEG}")
        a(f"v_pk_add_f32 {P(base+6)}, {P(t[A+'i'])}, {P(t[B+'r'])}")
        a(f"v_cvt_pk_bf16_f32 v{40+2*k}, v{base}, v{base+1}")
        a(f"v_cvt_pk_bf16_f32 v{41+2*k}, v{base+2}, v{base+3}")
        a(f"v_cvt_pk_bf16_f32 v{40+2*kc}, v{base+4}, v{base+5}")
        a(f"v_cvt_pk_bf16_f32 v{41+2*kc}, v{base+6}, v{base+7}")
    a("s_cmp_lg_u32 s20, 0")
    a("s_cbranch_scc1 K1_nosp2")
    set_exec_n0(a)
    a(f"v_mov_b32 v40, v41")
    a(f"v_mov_b32 v41, 0")
    for (k, kc, A, B) in ((1, 4, "A1", "B1"), (2, 3, "A2", "B2")):
        a(f"v_cvt_pk_bf16_f32 v{40+2*k}, v{t[A+'r']}, v{t[A+'r']+1}")
        a(f"v_cvt_pk_bf16_f32 v{41+2*k}, -v{t[B+'r']}, -v{t[B+'r']+1}")
        a(f"v_cvt_pk_bf16_f32 v{40+2*kc}, v{t[A+'i']}, v{t[A+'i']+1}")
        a(f"v_cvt_pk_bf16_f32 v{41+2*kc}, -v{t[B+'i']}, -v{t[B+'i']+1}")
    a("s_mov_b64 exec, -1")
    a("K1_nosp2:")
    mark(a, 4)
    for k in range(5):
        a(f"v_xor_b32 v{41+2*k}, v{41+2*k}, v{57+k}")
    transpose4(a, [40, 44, 48])
    mu = MODS[P_("mu", 0)]
    if "nou" in EXP: a("s_mov_b32 s14, 0")
    a(f"buffer_store_dwordx4 v[40:43], v52, s[12:15], 0 offen {mu}")
    a(f"buffer_store_dwordx4 v[44:47], v53, s[12:15], 0 offen {mu}")
    a("s_mov_b32 exec_hi, 0")
    a(f"buffer_store_dwordx4 v[48:51], v54, s[12:15], 0 offen {mu}")
    a("s_mov_b32 exec_hi, -1")
    stamp_end(a, 0)
    a("s_endpgm")
    a("K1_W:")
    a("s_cmp_ge_u32 s2, 576")
    a("s_cbranch_scc1 K1_end")
    a("s_sub_u32 s21, s2, 256")
    a("s_lshl_b32 s40, s21, 2\ns_add_u32 s40, s40, s20")
    a("s_mul_i32 s22, s21, 52429\ns_lshr_b32 s22, s22, 18")
    a("s_mul_i32 s23, s22, 5\ns_sub_u32 s23, s21, s23")
    a("s_and_b32 s24, s22, 7")
    a("s_lshr_b32 s25, s22, 3")
    a("s_lshl_b32 s26, s24, 3\ns_lshl_b32 s27, s20, 1\ns_add_u32 s26, s26, s27")
    a("s_lshl_b32 s27, s25, 8\ns_add_u32 s27, s27, s26\ns_mul_i32 s36, s27, 642")
    a("s_add_u32 s37, s36, 41088\ns_add_u32 s38, s37, 41088\ns_add_u32 s39, s38, 41088")
    a("s_lshl_b32 s23, s23, 6")
    a("v_add_u32 v2, s23, v1")
    a("v_cmp_eq_u32 vcc, 0, v2")
    a("v_mov_b32 v3, 0x140")
    a("v_cndmask_b32 v3, v2, v3, vcc")
    a("v_lshlrev_b32 v3, 1, v3")
    a("s_lshr_b32 s28, s26, 5\ns_lshl_b32 s28, s28, 12")
    a("s_lshl_b32 s29, s25, 9\ns_add_u32 s28, s28, s29")
    a("s_and_b32 s29, s26, 31\ns_lshl_b32 s29, s29, 4\ns_add_u32 s28, s28, s29")
    a(f"v_mul_u32_u24 v4, {CS}, v2")
    a("s_waitcnt lgkmcnt(0)")
    srd(a, 8, 6, 0, 2048*642)
    srd(a, 12, 16, 0, 2048*642)
    for j in range(2):
        for i in range(4):
            a(f"buffer_load_ushort v{8+4*j+i}, v3, s[8:11], s{36+i} offen offset:{642*j}", ("w", 4*j+i))
            a(f"buffer_load_ushort v{16+4*j+i}, v3, s[12:15], s{36+i} offen offset:{642*j}", ("w", 4*j+i))
    srd(a, 32, 18, WT_OFF, COLBYTES)
    a("s_cmp_ge_u32 s40, 540")
    a("s_cbranch_scc1 K1_W2")
    srd(a, 44, 48, 0, 640*3456)
    a("s_mul_i32 s21, s40, 2428\ns_lshr_b32 s21, s21, 16")
    a("s_mul_i32 s22, s21, 27\ns_sub_u32 s22, s40, s22")
    a(f"s_mul_i32 s41, s21, {32*3456}\ns_lshl_b32 s23, s22, 7\ns_add_u32 s41, s41, s23\ns_add_u32 s42, s41, {16*3456}")
    a("s_movk_i32 s43, 3456")
    a("s_mul_i32 s52, s22, 81920\ns_lshl_b32 s23, s21, 10\ns_add_u32 s52, s52, s23")
    for tt in range(1, 4): a(f"s_add_u32 s{52+tt}, s{51+tt}, 20480")
    a("s_branch K1_WJ")
    a("K1_W2:")
    srd(a, 44, 50, 0, 1728*1280)
    a("s_sub_u32 s21, s40, 540\ns_min_u32 s21, s21, 539")
    a("s_mul_i32 s22, s21, 6554\ns_lshr_b32 s22, s22, 16")
    a("s_mul_i32 s23, s22, 10\ns_sub_u32 s21, s21, s23")
    a("s_cmp_ge_u32 s22, 52\ns_cselect_b32 s23, 2, 0\ns_add_u32 s22, s22, s23")
    a("s_mul_i32 s23, s22, 9363\ns_lshr_b32 s23, s23, 16")
    a("s_mul_i32 s24, s23, 7\ns_sub_u32 s24, s22, s24")
    a("s_mul_i32 s25, s23, 14")
    a("s_add_u32 s26, s25, 7\ns_min_u32 s26, s26, 101")
    a("s_lshl_b32 s27, s24, 1\ns_add_u32 s41, s25, s27")
    a("s_add_u32 s27, s27, s26\ns_sub_u32 s27, s27, 6")
    a("s_cmp_ge_u32 s24, 3\ns_cselect_b32 s41, s27, s41")
    a("s_add_u32 s42, s41, 1")
    a("s_add_u32 s25, s25, 6\ns_add_u32 s26, s26, 6")
    a("s_cmp_eq_u32 s24, 6\ns_cselect_b32 s41, s25, s41\ns_cselect_b32 s42, s26, s42")
    a("s_lshl_b32 s23, s21, 7")
    a("s_mul_i32 s41, s41, 20480\ns_add_u32 s41, s41, s23\ns_mul_i32 s42, s42, 20480\ns_add_u32 s42, s42, s23")
    a("s_movk_i32 s43, 1280")
    a("s_and_b32 s23, s22, 3\ns_mul_i32 s23, s23, 70\ns_lshr_b32 s24, s22, 2\ns_mul_i32 s24, s24, 5\ns_add_u32 s23, s23, s24")
    a(f"s_add_u32 s23, s23, {W1F_SZ // 1024}")
    a("s_lshl_b32 s21, s21, 2")
    for tt in range(4):
        if tt: a("s_add_u32 s21, s21, 1")
        a("s_mul_i32 s24, s21, 52\ns_lshr_b32 s24, s24, 8")
        a("s_mul_i32 s25, s24, 275\ns_add_u32 s25, s25, s21\ns_add_u32 s25, s25, s23")
        a(f"s_lshl_b32 s{52+tt}, s25, 10")
    a("K1_WJ:")
    if "nowfl" in EXP: a("s_mov_b32 s46, 0")
    a("v_lshrrev_b32 v5, 3, v1\nv_and_b32 v6, 7, v1\nv_xor_b32 v6, v6, v5\nv_lshlrev_b32 v6, 4, v6")
    a("v_mad_u32_u24 v5, v5, s43, v6")
    a("s_lshl_b32 s21, s20, 12\ns_lshl_b32 s43, s43, 3")
    for e in range(4):
        if e & 1: a(f"s_add_u32 s{41+(e>>1)}, s{41+(e>>1)}, s43")
        a(f"s_add_u32 m0, s21, {e*1024}")
        a(f"buffer_load_dwordx4 v5, s[44:47], s{41+(e>>1)} offen lds", "dma")
    srd(a, 44, 18, WF_OFF, W1F_SZ + W2F_SZ)
    if "nowfs" in EXP or "nowfl" in EXP: a("s_mov_b32 s46, 0")
    a("v_lshrrev_b32 v5, 2, v1\nv_bfe_u32 v6, v1, 1, 1\nv_xor_b32 v6, v6, v5\nv_and_b32 v6, 7, v6\nv_lshlrev_b32 v6, 4, v6")
    a("v_lshl_add_u32 v6, v5, 7, v6\nv_and_b32 v5, 1, v1\nv_lshl_add_u32 v6, v5, 3, v6\nv_add_u32 v24, s21, v6")
    for tt in range(1, 4): a(f"v_xor_b32 v{24+tt}, {32*tt}, v24")
    a("v_lshlrev_b32 v7, 4, v1")
    mark(a, 1)
    for i in range(8):
        a.waitvm(lambda t: t == ("w", i))
        a(f"v_lshl_or_b32 v{8+i}, v{16+i}, 16, v{8+i}")
    mark(a, 2)
    mt = MODS[P_("mt", 0)]
    if "nowt" in EXP: a("s_mov_b32 s34, 0")
    a(f"buffer_store_dwordx4 v[8:11], v4, s[32:35], s28 offen {mt}")
    a(f"buffer_store_dwordx4 v[12:15], v4, s[32:35], s28 offen offset:16 {mt}")
    a("s_cmp_ge_u32 s40, 1080")
    a("s_cbranch_scc1 K1_Z")
    a.waitvm(lambda t: t == "dma")
    mark(a, 3)
    for tt in range(4):
        for j2 in range(2):
            a(f"ds_read_b64_tr_b16 {vr(28+4*tt+2*j2,2)}, v{24+tt} offset:{j2*2048}")
    for tt in range(4):
        a(f"s_waitcnt lgkmcnt({6-2*tt})")
        a(f"buffer_store_dwordx4 {vr(28+4*tt,4)}, v7, s[44:47], s{52+tt} offen {MODS[P_('mw', 0)]}")
    stamp_end(a, 0)
    a("s_endpgm")
    a("K1_Z:")
    a("s_cmp_ge_u32 s40, 1120")
    a("s_cbranch_scc1 K1_end2")
    srd(a, 44, 18, FL_OFF, 40960)
    a("s_sub_u32 s21, s40, 1080\ns_lshl_b32 s21, s21, 10")
    for i in range(4): a(f"v_mov_b32 v{28+i}, 0")
    a("buffer_store_dwordx4 v[28:31], v7, s[44:47], s21 offen")
    a("K1_end2:")
    a("s_waitcnt vmcnt(0)")
    stamp_end(a, 0)
    a("K1_end:")
    a("s_endpgm")
    return name, 128, "grid=(576,1,1) block=(256,1,1) lds=16384"

SCR = 143360
SC = "sc1"
POLL_MAX = 1 << 15
W2X = 232
def w2reg(q): return ar(4*q, 4) if q < 64 else vr(W2X + 4*(q-64), 4)
def w2_groups():
    G = []
    for q in range(70):
        L = [f"buffer_load_dwordx4 {w2reg(q)}, v0, s[56:59], s69 offen offset:{(q&3)*1024}"]
        if (q & 3) == 3: L.append("s_add_u32 s69, s69, 4096")
        G.append((L, ("w2", q)))
    return G
def w1_groups():
    G = []
    for q in range(35):
        L = []
        if (q & 3) == 0:
            L += [f"s_add_u32 m0, s70, {(q>>2)*4096}"]
            if q: L += ["s_add_u32 s68, s68, 4096"]
        L.append(f"buffer_load_dwordx4 v0, s[56:59], s68 offen offset:{(q&3)*1024} lds")
        G.append((L, ("w1", q)))
    return G

def kf_k2(a):
    XR, XI, WT, C64, S64, NS64, C32, S32, NS32 = 8, 24, 40, 56, 72, 88, 104, 112, 120
    T1C, T1S, T2C, T2S, AR, AI, TR, TI = 128, 144, 160, 176, 192, 208, 224, 240
    M = "v_mfma_f32_32x32x16_bf16"
    a("s_lshr_b32 s27, s20, 1")
    a("s_lshl_b32 s21, s27, 8\ns_add_u32 s21, s21, s2")
    a("s_cmp_ge_u32 s21, 320")
    a("s_cbranch_scc1 KF_idle")
    a(f"s_mul_i32 s21, s21, {CS}")
    a("s_and_b32 s25, s20, 1")
    a("s_lshl_b32 s22, s25, 12")
    a("s_add_u32 s23, s21, s22")
    a("s_xor_b32 s24, s22, 4096")
    a("s_add_u32 s24, s24, s21")
    a("v_lshlrev_b32 v2, 5, v1")
    a("s_waitcnt lgkmcnt(0)")
    srd(a, 8, 18, U_OFF, COLBYTES)
    for t in range(4):
        so = "s23" if t < 2 else "s24"
        a(f"buffer_load_dwordx4 {vr(XR+4*t,4)}, v2, s[8:11], {so} offen offset:{(t&1)*2048}", ("u", t))
        a(f"buffer_load_dwordx4 {vr(XI+4*t,4)}, v2, s[8:11], {so} offen offset:{(t&1)*2048+16}", ("u", t))
    srd(a, 12, 18, WT_OFF, COLBYTES)
    for q in range(4):
        a(f"buffer_load_dwordx4 {vr(WT+4*q,4)}, v0, s[12:15], s23 offen offset:{q*1024}", "wt")
    srd(a, 28, 18, Z_OFF, COLBYTES)
    srd(a, 56, 18, WF_OFF, W1F_SZ + W2F_SZ)
    a.pend = w1_groups()
    a.sprinkle(P_("p1", 12))
    a("v_and_b32 v4, 31, v1")
    a("v_lshrrev_b32 v5, 5, v1")
    a("s_lshl_b32 s25, s25, 5")
    a("v_add_u32 v6, s25, v4")
    a(f"v_cvt_f32_u32 v{TR}, v6")
    a(f"v_cvt_f32_u32 v{TR+1}, v4")
    a(f"v_lshl_add_u32 v7, v5, 2, s25")
    a(f"v_cvt_f32_u32 v{TR+2}, v7")
    a(f"v_lshlrev_b32 v7, 2, v5")
    a(f"v_cvt_f32_u32 v{TR+3}, v7")
    ST, ST5, SA = TR+4, TR+5, TR+6
    ANG, TMP = TI, TI+8
    a(f"v_mul_f32 v{ST}, {fhex(1/64)}, v{TR}")
    a(f"v_mul_f32 v{ST5}, {fhex(5.0)}, v{ST}")
    a(f"v_mul_f32 v{SA}, v{TR+2}, v{ST}")
    def cons_mat(Cb, Sb, NSb):
        def f(g):
            for i in range(8): a(f"v_cos_f32 v{TMP+i}, v{ANG+i}")
            for i in range(4): a(f"v_cvt_pk_bf16_f32 v{Cb+4*g+i}, v{TMP+2*i}, v{TMP+2*i+1}")
            for i in range(8): a(f"v_sin_f32 v{TMP+i}, v{ANG+i}")
            for i in range(4): a(f"v_cvt_pk_bf16_f32 v{Sb+4*g+i}, v{TMP+2*i}, v{TMP+2*i+1}")
            for i in range(4): a(f"v_xor_b32 v{NSb+4*g+i}, 0x80008000, v{Sb+4*g+i}")
        return f
    gen_angles(a, 32, SA, ST, ST5, ANG, cons_mat(C64, S64, NS64))
    def cons_tw(Cb, Sb):
        def f(g):
            for i in range(8): a(f"v_cos_f32 v{Cb+8*g+i}, v{ANG+i}")
            for i in range(8): a(f"v_sin_f32 v{Sb+8*g+i}, v{ANG+i}")
        return f
    a(f"v_mul_f32 v{ST}, {fhex(1/2048)}, v{TR}")
    a(f"v_mul_f32 v{ST5}, {fhex(5.0)}, v{ST}")
    a(f"v_mul_f32 v{SA}, v{TR+3}, v{ST}")
    gen_angles(a, 16, SA, ST, ST5, ANG, cons_tw(T1C, T1S))
    mark(a, 1)
    for t in range(4):
        a.waitvm(lambda x: x == ("u", t))
        a(f"{M} {vr(AR,16)}, {vr(XR+4*t,4)}, {vr(C64+4*t,4)}, {vr(AR,16) if t else 0}")
        a(f"{M} {vr(AI,16)}, {vr(XI+4*t,4)}, {vr(C64+4*t,4)}, {vr(AI,16) if t else 0}")
        a(f"{M} {vr(AR,16)}, {vr(XI+4*t,4)}, {vr(S64+4*t,4)}, {vr(AR,16)}")
        a(f"{M} {vr(AI,16)}, {vr(XR+4*t,4)}, {vr(NS64+4*t,4)}, {vr(AI,16)}")
        if t == 0:
            a(f"v_mul_f32 v{ST}, {fhex(1/32)}, v{TR+1}")
            a(f"v_mul_f32 v{ST5}, {fhex(5.0)}, v{ST}")
            a(f"v_mul_f32 v{SA}, v{TR+3}, v{ST}")
    gen_angles(a, 16, SA, ST, ST5, ANG, cons_mat(C32, S32, NS32))
    a(f"v_mul_f32 v{ST}, {fhex(1/2048)}, v{TR+1}")
    a(f"v_mul_f32 v{ST5}, {fhex(5.0)}, v{ST}")
    a(f"v_mul_f32 v{SA}, v{TR+2}, v{ST}")
    gen_angles(a, 16, SA, ST, ST5, ANG, cons_tw(T2C, T2S))
    a(f"s_mov_b32 s26, {fhex(2.0/(2048*640))}")
    for i in range(16):
        a(f"v_pk_mul_f32 {vr(T2C+2*i,2)}, {vr(T2C+2*i,2)}, s[26:27] op_sel_hi:[1,0]")
    cmul_pk(a, TR, TI, AR, AI, T1C, T1S, -1)
    OR_, OI_ = 8, 16
    cvt16(a, OR_, TR); cvt16(a, OI_, TI)
    for t in range(2):
        a(f"{M} {vr(AR,16)}, {vr(C32+4*t,4)}, {vr(OR_+4*t,4)}, {vr(AR,16) if t else 0}")
        a(f"{M} {vr(AI,16)}, {vr(C32+4*t,4)}, {vr(OI_+4*t,4)}, {vr(AI,16) if t else 0}")
        a(f"{M} {vr(AR,16)}, {vr(S32+4*t,4)}, {vr(OI_+4*t,4)}, {vr(AR,16)}")
        a(f"{M} {vr(AI,16)}, {vr(NS32+4*t,4)}, {vr(OR_+4*t,4)}, {vr(AI,16)}")
    a.waitvm(lambda x: x == "wt")
    for i in range(16):
        a(f"v_lshlrev_b32 v{T1C+i}, 16, v{WT+i}")
        a(f"v_and_b32 v{T1S+i}, 0xffff0000, v{WT+i}")
    cmul_pk(a, TR, TI, AR, AI, T1C, T1S, +1)
    cvt16(a, OR_, TR); cvt16(a, OI_, TI)
    for t in range(2):
        a(f"{M} {vr(AR,16)}, {vr(OR_+4*t,4)}, {vr(C32+4*t,4)}, {vr(AR,16) if t else 0}")
        a(f"{M} {vr(AI,16)}, {vr(OI_+4*t,4)}, {vr(C32+4*t,4)}, {vr(AI,16) if t else 0}")
        a(f"{M} {vr(AR,16)}, {vr(OI_+4*t,4)}, {vr(NS32+4*t,4)}, {vr(AR,16)}")
        a(f"{M} {vr(AI,16)}, {vr(OR_+4*t,4)}, {vr(S32+4*t,4)}, {vr(AI,16)}")
    a(f"s_lshl_b32 s24, s20, 12\ns_add_u32 s24, s24, {SCR}")
    a("v_add_u32 v4, s24, v0")
    a(f"s_xor_b32 s24, s20, 1\ns_lshl_b32 s24, s24, 12\ns_add_u32 s24, s24, {SCR}")
    a("v_add_u32 v5, s24, v0")
    a("v_lshlrev_b32 v6, 7, v6")
    a("v_lshrrev_b32 v7, 5, v1")
    a("v_lshl_add_u32 v6, v7, 4, v6")
    cmul_pk(a, TR, TI, AR, AI, T2C, T2S, +1)
    cvt16(a, OR_, TR); cvt16(a, OI_, TI)
    a.flush(99); a.sprinkle(0)
    for i in range(4):
        a(f"ds_write_b128 v4, {vr(8+4*i,4)} offset:{i*1024}")
    def st4(t, r_, i_):
        a(f"{M} {vr(AR,16)}, {vr(r_,4)}, {vr(C64+4*t,4)}, {vr(AR,16) if t else 0}")
        a(f"{M} {vr(AI,16)}, {vr(i_,4)}, {vr(C64+4*t,4)}, {vr(AI,16) if t else 0}")
        a(f"{M} {vr(AR,16)}, {vr(i_,4)}, {vr(NS64+4*t,4)}, {vr(AR,16)}")
        a(f"{M} {vr(AI,16)}, {vr(r_,4)}, {vr(S64+4*t,4)}, {vr(AI,16)}")
    st4(0, OR_, OI_)
    a("s_waitcnt lgkmcnt(0)")
    a("s_barrier")
    for i in range(4):
        a(f"ds_read_b128 {vr(24+4*i,4)}, v5 offset:{i*1024}")
    st4(1, OR_+4, OI_+4)
    a("s_waitcnt lgkmcnt(0)")
    st4(2, 24, 32)
    st4(3, 28, 36)
    for q in range(4):
        O = TR + 4*q
        a(f"v_cvt_pk_bf16_f32 v{O}, v{AR+4*q}, v{AR+4*q+1}")
        a(f"v_cvt_pk_bf16_f32 v{O+1}, v{AR+4*q+2}, v{AR+4*q+3}")
        a(f"v_cvt_pk_bf16_f32 v{O+2}, v{AI+4*q}, v{AI+4*q+1}")
        a(f"v_cvt_pk_bf16_f32 v{O+3}, v{AI+4*q+2}, v{AI+4*q+3}")
    for q in range(4):
        O = TR + 4*q
        a(f"v_permlane32_swap_b32 v{O}, v{O+2}")
        a(f"v_permlane32_swap_b32 v{O+1}, v{O+3}")
        a(f"buffer_store_dwordx4 {vr(O,4)}, v6, s[28:31], s21 offen offset:{q*32} {SC}")
    mark(a, 2)
    a("s_waitcnt vmcnt(0)")
    a("s_branch KF_k2done")
    a("KF_idle:")
    a("s_waitcnt lgkmcnt(0)")
    srd(a, 56, 18, WF_OFF, W1F_SZ + W2F_SZ)
    a.pend = w1_groups()
    a.flush(99)
    a("s_barrier")
    a("KF_k2done:")
    mark(a, 3)
    a("s_barrier")

def flag_store(a, uid, soff):
    p = a.pause()
    a("s_cmp_lg_u32 s20, 0")
    a(f"s_cbranch_scc1 KF_nf{uid}")
    a("v_mov_b32 v2, 1\nv_mov_b32 v3, 0")
    a("s_mov_b64 exec, 1")
    a(f"buffer_store_dword v2, v3, s[64:67], {soff} offen sc0 sc1")
    a("s_mov_b64 exec, -1")
    a(f"KF_nf{uid}:")
    a.resume(p)
def poll(a, uid, glob, soff, T, wave):
    p = a.pause()
    a(f"s_cmp_lg_u32 s20, {wave}")
    a(f"s_cbranch_scc1 KF_pd{uid}")
    if glob: a(f"v_lshlrev_b32 v{T+4}, 7, v1")
    else: a(f"v_and_b32 v{T+4}, 15, v1\nv_lshlrev_b32 v{T+4}, 6, v{T+4}")
    a(f"s_mov_b32 s72, {POLL_MAX}")
    a(f"KF_pl{uid}:")
    if glob:
        a(f"buffer_load_dwordx4 {vr(T,4)}, v{T+4}, s[64:67], {soff} offen sc0 sc1")
        a("s_waitcnt vmcnt(0)")
        a(f"v_min_u32 v{T}, v{T}, v{T+1}\nv_min3_u32 v{T}, v{T}, v{T+2}, v{T+3}")
    else:
        a(f"buffer_load_dword v{T}, v{T+4}, s[64:67], {soff} offen sc0 sc1")
        a("s_waitcnt vmcnt(0)")
    a(f"v_cmp_eq_u32 vcc, 0, v{T}")
    a("s_sub_u32 s72, s72, 1")
    a(f"s_cbranch_scc1 KF_pd{uid}")
    a(f"s_cbranch_vccnz KF_pl{uid}")
    a(f"KF_pd{uid}:")
    a("s_barrier")
    a.resume(p)

def kf_k3(a):
    XRAW = 196
    srd(a, 64, 18, FL_OFF, 40960)
    a("s_lshr_b32 s21, s2, 2\ns_lshl_b32 s21, s21, 7\ns_and_b32 s22, s2, 3\ns_lshl_b32 s22, s22, 2\ns_add_u32 s21, s21, s22")
    flag_store(a, 1, "s21")
    a("s_mov_b32 s21, s73")
    srd(a, 12, 4, 0, 2048*1280)
    a("v_lshrrev_b32 v55, 5, v1")
    a("v_and_b32 v56, 31, v1")
    a("v_mul_u32_u24 v57, 0x500, v55")
    a("v_lshl_add_u32 v126, v56, 3, v57")
    a("s_lshl_b32 s23, s21, 3\ns_lshl_b32 s24, s20, 1\ns_add_u32 s23, s23, s24\ns_mul_i32 s23, s23, 1280")
    for i in range(5):
        a(f"buffer_load_dwordx2 {vr(XRAW+2*i,2)}, v126, s[12:15], s23 offen offset:{i*256}", "x")
    a.pend = w2_groups()
    n2 = P_("n2", 20)
    a.sprinkle(P_("p2", 10), n2)
    a("s_lshl_b32 s22, s21, 5")
    a("v_and_b32 v53, 15, v1")
    a("v_lshrrev_b32 v54, 4, v1")
    a("s_lshl_b32 s24, s20, 4")
    a("v_add_u32 v50, s24, v53")
    a("v_lshlrev_b32 v51, 2, v54")
    a("v_and_b32 v49, 16, v1")
    a(f"s_mov_b32 s26, {CS}")
    COL, FLIP = 116, 121
    col_tables(a, 50, 55, COL, FLIP, 49, 100, 101, 102, 26, 40)
    p = a.pause()
    a("s_cmp_lg_u32 s20, 0")
    a("s_cbranch_scc1 K3_nosp1")
    set_exec_n0(a)
    col_tables_special(a, 55, COL, FLIP, 49, 100)
    a("s_mov_b64 exec, -1")
    a("K3_nosp1:")
    a.resume(p)
    srd(a, 8, 18, Z_OFF, COLBYTES)
    srd(a, 28, 18, HR_OFF, 2048*1280)
    srd(a, 32, 18, A2_OFF, 2048*1280)
    a("v_lshrrev_b32 v57, 3, v56\nv_lshlrev_b32 v57, 10, v57")
    a("v_and_b32 v58, 3, v56\nv_lshl_add_u32 v57, v58, 8, v57")
    a("v_lshl_add_u32 v57, v55, 4, v57")
    a("v_and_b32 v58, 4, v56\nv_lshl_add_u32 v127, v58, 1, v57")
    a("s_lshr_b32 s50, s21, 1\ns_mul_i32 s50, s50, 20480")
    a("s_and_b32 s24, s21, 1\ns_lshl_b32 s24, s24, 7\ns_add_u32 s50, s50, s24")
    a("s_lshl_b32 s24, s20, 5\ns_add_u32 s50, s50, s24")
    for i in range(1, 5): a(f"s_add_u32 s{50+i}, s{49+i}, 4096")
    YOFF = SCR
    a(f"s_mul_i32 s24, s20, {656*4}\ns_add_u32 s24, s24, {YOFF}")
    a("v_lshl_add_u32 v62, v56, 4, s24")
    a("v_mul_u32_u24 v63, 0x202, v55\nv_lshlrev_b32 v63, 16, v63\nv_add_u32 v63, 0x01000c0c, v63")
    a("v_lshrrev_b32 v57, 2, v53\nv_xor_b32 v57, v57, v54\nv_lshlrev_b32 v57, 3, v57")
    a(f"v_lshl_add_u32 v60, v50, 5, v57\nv_add_u32 v60, {SCR}, v60")
    a("v_and_b32 v57, 3, v1\nv_xor_b32 v57, v57, v54\nv_lshlrev_b32 v57, 3, v57")
    a(f"v_lshrrev_b32 v58, 2, v1\nv_lshl_add_u32 v61, v58, 5, v57\nv_add_u32 v61, {SCR}, v61")
    a("s_lshl_b32 s24, s20, 5")
    a("v_add_u32 v52, s24, v53")
    a("v_mul_u32_u24 v57, 20, v52")
    a(f"v_mul_u32_u24 v58, {656*4}, v54")
    a(f"v_add_u32 v58, {YOFF}, v58")
    for tile in range(2):
        for aa in range(5):
            k = 512*aa + 320*tile
            if aa == 0:
                a(f"v_add_u32 v{106+5*tile}, v57, v58" if tile == 0 else f"v_add_u32 v{106+5*tile}, 0x140, v106")
            else:
                a(f"v_add_u32 v59, {k}, v57")
                a(f"v_add_u32 v100, {k-2560}, v57")
                a(f"v_min_u32 v59, v59, v100")
                a(f"v_add_u32 v{106+5*tile+aa}, v59, v58")
    a("v_cvt_f32_u32 v98, v51")
    a("v_lshlrev_b32 v99, 31, v1\nv_or_b32 v99, 0.5, v99")
    for tile in range(2):
        if tile: a("v_add_u32 v52, 16, v52")
        a("v_cvt_f32_u32 v96, v52")
        a(f"v_mul_f32 v96, {fhex(-1.0/128)}, v96")
        a(f"v_mul_f32 v97, {fhex(13.0)}, v96")
        for tp in range(2):
            for i in range(8):
                if tp == 0 and i == 0: a("v_mul_f32 v22, v98, v96")
                else: a(f"v_add_f32 v{22+i}, v{22+(i-1)%8}, v{97 if i%4==0 else 96}")
            for i in range(8): a(f"v_cos_f32 v{30+i}, v{22+i}")
            for i in range(8): a(f"v_sin_f32 v{38+i}, v{22+i}")
            if tp == 0:
                p = a.pause()
                a("s_mov_b64 exec, 0xffff")
                a("v_mov_b32 v30, 0.5")
                a("v_mov_b32 v38, v99")
                a("s_mov_b64 exec, -1")
                a.resume(p)
            for i in range(4): a(f"v_cvt_pk_bf16_f32 v{64+8*tile+4*tp+i}, v{30+2*i}, v{31+2*i}")
            for i in range(4): a(f"v_cvt_pk_bf16_f32 v{80+8*tile+4*tp+i}, v{38+2*i}, v{39+2*i}")
    a(f"s_mov_b32 s40, {fhex(C1)}\ns_mov_b32 s42, {fhex(C2)}\ns_mov_b32 s44, {fhex(S1)}\ns_mov_b32 s46, {fhex(S2)}")
    a.flush(a.budget); a.sprinkle(0)
    a.waitvm(lambda t: t == "x")
    XU = 176
    for i in range(10):
        a(f"v_lshlrev_b32 v{XU+2*i}, 16, v{XRAW+i}\nv_and_b32 v{XU+2*i+1}, 0xffff0000, v{XRAW+i}")
    mark(a, 4)
    poll(a, 1, True, "0", 206, 0)
    mark(a, 5)
    a(f"buffer_load_dwordx4 v[2:5], v{COL}, s[8:11], s22 offen", "z")
    a(f"buffer_load_dwordx4 v[6:9], v{COL+1}, s[8:11], s22 offen", "z")
    a("s_mov_b32 exec_hi, 0")
    a(f"buffer_load_dwordx4 v[10:13], v{COL+2}, s[8:11], s22 offen", "z")
    a("s_mov_b32 exec_hi, -1")
    a.waitvm(lambda t: t == "z")
    mark(a, 6)
    a.sprinkle(P_("p3", 10), P_("n3", 24))
    transpose4(a, [2, 6, 10])
    zr = [22+4*k for k in range(5)]; zi = [24+4*k for k in range(5)]
    for k in range(5):
        a(f"v_xor_b32 v{3+2*k}, v{3+2*k}, v{FLIP+k}")
        a(f"v_lshlrev_b32 v{zr[k]}, 16, v{2+2*k}\nv_and_b32 v{zr[k]+1}, 0xffff0000, v{2+2*k}")
        a(f"v_lshlrev_b32 v{zi[k]}, 16, v{3+2*k}\nv_and_b32 v{zi[k]+1}, 0xffff0000, v{3+2*k}")
    P = lambda r: vr(r, 2)
    NEG = "neg_lo:[0,1] neg_hi:[0,1]"
    p = a.pause()
    a("s_cmp_lg_u32 s20, 0")
    a("s_cbranch_scc1 K3_nosp2")
    set_exec_n0(a)
    for (k, kc) in ((1, 4), (2, 3)):
        a(f"v_mov_b32 v2, v{zr[kc]}\nv_mov_b32 v3, v{zr[kc]+1}")
        a(f"v_pk_add_f32 {P(zr[kc])}, {P(zr[k])}, {P(zi[kc])}")
        a(f"v_pk_add_f32 {P(zr[k])}, {P(zr[k])}, {P(zi[kc])} {NEG}")
        a(f"v_pk_add_f32 {P(zi[kc])}, v[2:3], {P(zi[k])} {NEG}")
        a(f"v_pk_add_f32 {P(zi[k])}, {P(zi[k])}, v[2:3]")
    a(f"v_mov_b32 v{zi[0]}, v{zr[0]}\nv_mov_b32 v{zi[0]+1}, v{zr[0]+1}")
    a(f"v_mov_b32 v{zr[0]}, 0\nv_mov_b32 v{zr[0]+1}, 0")
    a("s_mov_b64 exec, -1")
    a("K3_nosp2:")
    a.resume(p)
    T = 128
    t = dft5_core(a, zr, zi, T, 40, 42, 44, 46)
    O = lambda aa, part: 2 + 4*(aa >> 1) + 2*part + (aa & 1)
    a(f"v_cvt_pk_bf16_f32 v{O(0,0)}, v{t['Z0r']}, v{t['Z0r']+1}")
    a(f"v_cvt_pk_bf16_f32 v{O(0,1)}, v{t['Z0i']}, v{t['Z0i']+1}")
    for (k, kc, A, B, base) in ((1, 4, "A1", "B1", T), (2, 3, "A2", "B2", T+8)):
        a(f"v_pk_add_f32 {P(base)}, {P(t[A+'r'])}, {P(t[B+'i'])} {NEG}")
        a(f"v_pk_add_f32 {P(base+2)}, {P(t[A+'i'])}, {P(t[B+'r'])}")
        a(f"v_pk_add_f32 {P(base+4)}, {P(t[A+'r'])}, {P(t[B+'i'])}")
        a(f"v_pk_add_f32 {P(base+6)}, {P(t[A+'i'])}, {P(t[B+'r'])} {NEG}")
        if kc == 4:
            a(f"v_cvt_pk_bf16_f32 v22, v{base+4}, v{base+5}")
            a(f"v_cvt_pk_bf16_f32 v23, v{base+6}, v{base+7}")
        else:
            a(f"v_cvt_pk_bf16_f32 v{O(kc,0)}, v{base+4}, v{base+5}")
            a(f"v_cvt_pk_bf16_f32 v{O(kc,1)}, v{base+6}, v{base+7}")
        a(f"v_cvt_pk_bf16_f32 v{O(k,0)}, v{base}, v{base+1}")
        a(f"v_cvt_pk_bf16_f32 v{O(k,1)}, v{base+2}, v{base+3}")
    for p_ in range(2):
        for part in range(2):
            a(f"ds_write_b64 v60, {vr(2+4*p_+2*part,2)} offset:{p_*4096+part*2048}")
    a(f"ds_write_b32 v60, v22 offset:{8192}")
    a(f"ds_write_b32 v60, v23 offset:{8192+2048}")
    a("s_waitcnt lgkmcnt(0)")
    a("s_barrier")
    AF, ACC = 128, 24
    for p_ in range(3):
        for t4 in range(4):
            for j2 in range(2):
                a(f"ds_read_b64_tr_b16 {vr(AF+16*p_+4*t4+2*j2,2)}, v61 offset:{p_*4096+t4*1024+j2*512}")
    for p_ in range(3):
        for t4 in range(4):
            a(f"s_waitcnt lgkmcnt({min(15, 22-2*(4*p_+t4))})")
            if p_ == 2 and t4 == 3: a("s_barrier")
            for tile in range(2):
                acc = vr(ACC+8*p_+4*tile, 4)
                B = (64 if t4 < 2 else 80) + 8*tile + 4*(t4 & 1)
                a(f"v_mfma_f32_16x16x32_bf16 {acc}, {vr(AF+16*p_+4*t4,4)}, {vr(B,4)}, {acc if t4 else 0}")
    for aa in range(5):
        for tile in range(2):
            r0 = ACC + 8*(aa >> 1) + 4*tile + 2*(aa & 1)
            a(f"v_cvt_pk_bf16_f32 v{2+5*tile+aa}, v{r0}, v{r0+1}")
            a(f"ds_write_b32 v{106+5*tile+aa}, v{2+5*tile+aa}")
    a("s_waitcnt lgkmcnt(0)")
    a("s_barrier")
    Y = 24
    for i in range(5):
        a(f"ds_read_b128 {vr(Y+4*i,4)}, v62 offset:{i*512}")
    for i in range(5):
        a(f"s_waitcnt lgkmcnt({4-i})")
        for e in range(4):
            a(f"v_perm_b32 v{Y+4*i+e}, v{Y+4*i+e}, v{Y+4*i+e}, v63")
        a(f"v_pk_add_f32 {P(Y+4*i)}, {P(Y+4*i)}, {P(XU+4*i)}")
        a(f"v_pk_add_f32 {P(Y+4*i+2)}, {P(Y+4*i+2)}, {P(XU+4*i+2)}")
        a(f"v_cvt_pk_bf16_f32 v{2+2*i}, v{Y+4*i}, v{Y+4*i+1}")
        a(f"v_cvt_pk_bf16_f32 v{3+2*i}, v{Y+4*i+2}, v{Y+4*i+3}")
        a(f"buffer_store_dwordx2 {vr(2+2*i,2)}, v126, s[28:31], s23 offen offset:{i*256} {SC}")
    for i in range(10):
        a(f"v_lshlrev_b32 v{Y+2*i}, 16, v{2+i}\nv_and_b32 v{Y+2*i+1}, 0xffff0000, v{2+i}")
    ln_stats(a, Y, 10, 96, 98, 100, 102, 104, 64)
    a.sprinkle(0)
    for i in range(5):
        a(f"v_pk_fma_f32 {P(Y+4*i)}, {P(Y+4*i)}, v[102:103], v[104:105] op_sel_hi:[1,0,0]")
        a(f"v_pk_fma_f32 {P(Y+4*i+2)}, {P(Y+4*i+2)}, v[102:103], v[104:105] op_sel_hi:[1,0,0]")
        a(f"v_cvt_pk_bf16_f32 v{12+2*i}, v{Y+4*i}, v{Y+4*i+1}")
        a(f"v_cvt_pk_bf16_f32 v{13+2*i}, v{Y+4*i+2}, v{Y+4*i+3}")
        a(f"buffer_store_dwordx2 {vr(12+2*i,2)}, v127, s[32:35], s{50+i} offen {SC}")
    mark(a, 7)
    a("s_waitcnt vmcnt(0)")
    a("s_barrier")

def kf_k4(a):
    M = "v_mfma_f32_16x16x32_bf16"
    KP = P_("kp", 6)
    ACC, WF, BIAS, RING, TRA = 8, 64, 120, 148, 228
    a("s_lshl_b32 s21, s73, 6\ns_add_u32 s21, s21, 8192")
    flag_store(a, 2, "s21")
    mark(a, 8)
    RAWB = WF + 28
    a("v_lshrrev_b32 v7, 4, v1\nv_lshlrev_b32 v7, 3, v7")
    srd(a, 12, 6, 0, 3456)
    a("s_lshl_b32 s27, s74, 5")
    for t in range(7):
        a(f"buffer_load_dwordx2 {vr(RAWB+2*t,2)}, v7, s[12:15], s27 offen offset:{32*t}", "bias")
    a.budget = 99
    a.flush(P_("n4", 6))
    a("s_lshr_b32 s23, s73, 4\ns_lshl_b32 s23, s23, 3\ns_lshl_b32 s25, s20, 1\ns_add_u32 s23, s23, s25")
    a("s_mul_i32 s26, s23, 20480")
    a("v_add_u32 v6, 0x5000, v0")
    srd(a, 36, 18, H_OFF, 128*HRT)
    a(f"v_add_u32 v{TRA+1}, {3*20480}, v0\nv_add_u32 v{TRA+2}, {6*20480}, v0")
    a(f"s_mul_i32 s29, s23, {HRT}")
    a("s_and_b32 s30, s73, 15\ns_lshr_b32 s31, s30, 1\ns_mul_i32 s31, s31, 7168\ns_add_u32 s29, s29, s31\ns_and_b32 s30, s30, 1")
    a("s_mul_i32 s31, s30, 3072\ns_add_u32 s40, s29, s31")
    a("s_lshl_b32 s31, s30, 3\ns_add_u32 s41, s29, s31\ns_add_u32 s41, s41, 6144")
    a(f"v_add_u32 v4, {HRT}, v0")
    def wread(kb):
        buf = WF + 28*(kb & 1)
        if "trx" in EXP:
            return [f"ds_read_b64_tr_b16 {vr(buf+4*t+2*j2,2)}, v{TRA+kb//8} offset:{(kb%8)*7168+j2*3584+t*32}" for t in range(7) for j2 in range(2)]
        return [f"ds_read_b128 {vr(buf+4*t,4)}, v{0 if t < 3 else TRA+t//3} offset:{(t%3)*20480+kb*1024}" for t in range(7)]
    if "trx" in EXP:
        a("v_lshrrev_b32 v2, 2, v1\nv_mul_u32_u24 v2, 0xe0, v2\nv_and_b32 v3, 3, v1")
        a(f"v_lshl_add_u32 v{TRA}, v3, 3, v2")
        a(f"v_add_u32 v{TRA+1}, {8*7168}, v{TRA}\nv_add_u32 v{TRA+2}, {16*7168}, v{TRA}")
    a.waitvm(lambda t: t == "bias")
    for t in range(14):
        a(f"v_lshlrev_b32 v{BIAS+2*t}, 16, v{RAWB+t}\nv_and_b32 v{BIAS+2*t+1}, 0xffff0000, v{RAWB+t}")
    for l in wread(0): a(l)
    a("s_and_b32 s21, s73, 0xf0\ns_lshl_b32 s21, s21, 6\ns_add_u32 s21, s21, 8192")
    mark(a, 9)
    poll(a, 2, False, "s21", 206, 1)
    mark(a, 10)
    def act(kb):
        L = []
        for rho in range(2):
            L.append(([f"buffer_load_dwordx4 {vr(RING+8*(kb%KP)+4*rho,4)}, v{6 if rho else 0}, s[32:35], s26 offen offset:{(kb&3)*1024}"]
                      + (["s_add_u32 s26, s26, 4096"] if (rho == 1 and (kb & 3) == 3) else []), ("act", kb)))
        return L
    for kb in range(KP):
        for L, tag in act(kb):
            for l in L: a(l, tag)
    n5 = P_("n5", 20)
    for kb in range(20):
        buf = WF + 28*(kb & 1)
        if "noact" in EXP and kb >= KP: a("s_waitcnt lgkmcnt(0)")
        else: a.waitvm(lambda t: t == ("act", kb), "lgkmcnt(0)")
        if kb == 1 and "mk4" in EXP: mark(a, 9)
        if kb == 19 and "mk4" in EXP: mark(a, 8)
        mf = []
        for t in range(7):
            for rho in range(2):
                acc = vr(ACC+28*rho+4*t, 4)
                c = acc if kb else vr(BIAS+4*t, 4)
                mf.append(f"{M} {acc}, {vr(buf+4*t,4)}, {vr(RING+8*(kb%KP)+4*rho,4)}, {c}")
        if kb < 19:
            rd = wread(kb+1)
            for i in range(14):
                a(mf[i])
                if i < len(rd): a(rd[i])
                if i == 8 and n5 > 0: a.flush(1); n5 -= 1
            if kb + KP < 20 and "noact" not in EXP:
                for L, tag in act(kb+KP):
                    for l in L: a(l, tag)
        else:
            def epi(idx):
                rho, p = idx % 2, idx // 2
                o = WF + 12*(idx % 2)
                L = []
                nt = 2 if p < 3 else 1
                for j in range(nt):
                    r0 = ACC+28*rho+4*(2*p+j)
                    L += [f"v_max_f32 v{o+4*j+i}, 0, v{r0+i}" for i in range(4)]
                    L += [f"v_pk_mul_f32 {vr(o+4*j+2*i,2)}, {vr(o+4*j+2*i,2)}, {vr(o+4*j+2*i,2)}" for i in range(2)]
                    L += [f"v_cvt_pk_bf16_f32 v{o+8+2*j+i}, v{o+4*j+2*i}, v{o+4*j+2*i+1}" for i in range(2)]
                va = 4 if rho else 0
                if p < 3: L += [f"buffer_store_dwordx4 {vr(o+8,4)}, v{va}, s[36:39], s40 offen offset:{p*1024} {SC}"]
                else: L += [f"buffer_store_dwordx2 {vr(o+8,2)}, v{va}, s[36:39], s41 offen {SC}"]
                return L
            sched = {5: 0, 7: 1, 9: 2, 11: 3, 13: 4}
            for i in range(14):
                a(mf[i])
                if i in sched:
                    for l in epi(sched[i]): a(l)
            for idx in (5, 6, 7):
                for l in epi(idx): a(l)
    mark(a, 11)
    a("s_waitcnt vmcnt(0)")
    a("s_barrier")

def kf_k5(a):
    D = P_("k5d", 7)
    M = "v_mfma_f32_16x16x32_bf16"
    ACC, RING, INIT, VH = 8, 96, 208, 228
    a("s_lshl_b32 s21, s73, 6\ns_add_u32 s21, s21, 24576")
    flag_store(a, 3, "s21")
    a("s_lshr_b32 s23, s73, 3\ns_and_b32 s24, s73, 7\ns_mul_i32 s24, s24, 160")
    a("v_and_b32 v2, 15, v1\nv_mul_u32_u24 v2, 0x500, v2\nv_lshrrev_b32 v7, 4, v1\nv_lshlrev_b32 v7, 3, v7\nv_add_u32 v6, v2, v7")
    a("s_lshl_b32 s48, s23, 2\ns_add_u32 s48, s48, s20\ns_mul_i32 s48, s48, 20480\ns_add_u32 s48, s48, s24")
    srd(a, 12, 60, 0, 1280)
    srd(a, 28, 18, HR_OFF, 2048*1280)
    RAW = 148
    for t in range(5):
        a(f"buffer_load_dwordx2 {vr(RAW+2*t,2)}, v6, s[28:31], s48 offen offset:{32*t}", "init")
        a(f"buffer_load_dwordx2 {vr(RAW+10+2*t,2)}, v7, s[12:15], s24 offen offset:{32*t}", "init")
    a.budget = 99
    a.flush(99)
    a(f"s_mul_i32 s26, s23, {4*HRT}\ns_lshl_b32 s25, s20, 10\ns_add_u32 s26, s26, s25")
    for r in range(4):
        a(f"s_add_u32 s50, s20, {r}\ns_and_b32 s50, s50, 3\ns_mul_i32 s51, s50, {HRT}")
        a(f"v_add_u32 v{VH+r}, s51, v0")
        if r: a(f"s_mul_i32 s{40+r}, s50, 15360")
    srd(a, 44, 62, 0, 2048*1280)
    a.waitvm(lambda t: t == "init")
    for i in range(10):
        a(f"v_lshlrev_b32 v{INIT+2*i}, 16, v{RAW+i}\nv_and_b32 v{INIT+2*i+1}, 0xffff0000, v{RAW+i}")
        a(f"v_lshlrev_b32 v2, 16, v{RAW+10+i}\nv_and_b32 v3, 0xffff0000, v{RAW+10+i}")
        a(f"v_pk_add_f32 {vr(INIT+2*i,2)}, {vr(INIT+2*i,2)}, v[2:3]")
    a("s_and_b32 s21, s73, 0xf0\ns_lshl_b32 s21, s21, 6\ns_add_u32 s21, s21, 24576")
    mark(a, 12)
    poll(a, 3, False, "s21", 88, 1)
    mark(a, 13)
    ORD = (1, 2, 3, 0)
    def hload(s, r):
        a(f"buffer_load_dwordx4 {vr(RING+16*(s%D)+4*r,4)}, v{VH+r}, s[36:39], s26 offen", ("h", s, r))
        if r == 0: a("s_add_u32 s26, s26, 4096")
    for s in range(D):
        for r in ORD: hload(s, r)
    NS = 14
    for s in range(NS):
        if s == NS-1:
            a("s_cmp_lt_u32 s20, 2")
            a("s_cbranch_scc1 K5_skip")
        for r in ORD:
            if s < D or "noh" not in EXP: a.waitvm(lambda t: t == ("h", s, r))
            if s == 1 and r == 1 and "mk4" in EXP: mark(a, 12)
            for t in range(5):
                acc = vr(ACC+20*r+4*t, 4)
                c = acc if s else (vr(INIT+4*t, 4) if r == 0 else "0")
                a(f"{M} {acc}, {w2reg(5*s+t)}, {vr(RING+16*(s%D)+4*r,4)}, {c}")
            if s+D < NS and "noh" not in EXP: hload(s+D, r)
    a("K5_skip:")
    mark(a, 14)
    for r in range(1, 4):
        a(f"v_add_u32 v2, s{40+r}, v0")
        for t in range(5):
            a(f"ds_write_b128 v2, {vr(ACC+20*r+4*t,4)} offset:{(r-1)*5120+t*1024}")
    a("s_mul_i32 s50, s20, 15360")
    a("v_add_u32 v2, s50, v0")
    a("s_waitcnt lgkmcnt(0)")
    a("s_barrier")
    RB = ACC + 20
    for t in range(5):
        for sidx in range(3):
            a(f"ds_read_b128 {vr(RB+12*t+4*sidx,4)}, v2 offset:{sidx*5120+t*1024}")
    for t in range(5):
        a(f"s_waitcnt lgkmcnt({12-3*t})")
        r0 = ACC + 4*t; b = RB + 12*t
        for i in range(2):
            a(f"v_pk_add_f32 {vr(r0+2*i,2)}, {vr(r0+2*i,2)}, {vr(b+2*i,2)}")
            a(f"v_pk_add_f32 {vr(b+4+2*i,2)}, {vr(b+4+2*i,2)}, {vr(b+8+2*i,2)}")
        for i in range(2):
            a(f"v_pk_add_f32 {vr(r0+2*i,2)}, {vr(r0+2*i,2)}, {vr(b+4+2*i,2)}")
        for i in range(2):
            a(f"v_cvt_pk_bf16_f32 v{RING+2*t+i}, v{r0+2*i}, v{r0+2*i+1}")
        a(f"buffer_store_dwordx2 {vr(RING+2*t,2)}, v6, s[44:47], s48 offen offset:{32*t}")

def kf(a):
    name = "kf_kernel"
    a.vm = []
    a(kernel_begin(name))
    stamp_begin(a)
    a("s_load_dwordx2 s[18:19], s[0:1], 80")
    a("s_load_dwordx2 s[4:5], s[0:1], 0")
    a("s_load_dwordx2 s[6:7], s[0:1], 40")
    a("s_load_dwordx4 s[60:63], s[0:1], 56")
    a("v_lshrrev_b32 v2, 6, v0")
    a("v_and_b32 v1, 63, v0")
    a("v_readfirstlane_b32 s20, v2")
    if STAMP: a("s_mov_b32 s75, s20")
    a("s_cmp_ge_u32 s2, 256")
    a("s_cbranch_scc1 KF_end")
    a("v_lshlrev_b32 v0, 4, v1")
    a("s_and_b32 s73, s2, 7\ns_lshl_b32 s73, s73, 5\ns_lshr_b32 s22, s2, 3\ns_add_u32 s73, s73, s22")
    a("s_and_b32 s74, s73, 15\ns_mul_i32 s74, s74, 7\ns_min_u32 s74, s74, 101")
    a("s_mul_i32 s70, s20, 35840")
    a("s_mul_i32 s68, s74, 20480\ns_add_u32 s68, s68, s70")
    a(f"s_and_b32 s69, s73, 7\ns_lshl_b32 s69, s69, 2\ns_add_u32 s69, s69, s20\ns_mul_i32 s69, s69, {70*1024}\ns_add_u32 s69, s69, {W1F_SZ}")
    kf_k2(a)
    kf_k3(a)
    kf_k4(a)
    a("s_mov_b64 s[16:17], s[60:61]\ns_mov_b64 s[14:15], s[62:63]") if False else None
    kf_k5(a)
    stamp_end(a, 1)
    a("KF_end:")
    a("s_endpgm")
    return name, (256, 256), "grid=(256,1,1) block=(256,1,1) lds=163840"

KERNELS = [k1, kf]

def main():
    a = Asm()
    infos = []
    for k in KERNELS:
        infos.append(k(a))
    a("CODE_END:")
    a("s_endpgm")
    body = a.finalize()
    hdr = open("cdna_kernels/" + NAME + ".s.ref").read().split("; Override launch")[0]
    hdr += "; generated by a python script (hand-designed kernels); see comments in each stage\n"
    for n, vg, l in infos:
        hdr += f"; @launch kernel={n} {l}\n"
    out = hdr + '.amdgcn_target "amdgcn-amd-amdhsa--gfx950"\n' + body
    for n, vg, l in infos:
        out += (kernel_desc(n, vg[0]+vg[1], sgpr=98, accum=vg[0]) if isinstance(vg, tuple) else kernel_desc(n, vg, sgpr=98)) + "\n"
    open(sys.argv[1], "w").write(out)
    print("nops inserted:", a.nnops, "lines:", len(out.splitlines()))
    open("offs.txt", "w").write(repr(dict(U=U_OFF, WT=WT_OFF, WF=WF_OFF, FL=FL_OFF, Z=Z_OFF, A2=A2_OFF, HR=HR_OFF, H=H_OFF)))

if __name__ == "__main__":
    main()
```
